```python
import torch

def _softmax(x, axis=-1):
    return torch.softmax(x, dim=axis)

def _gelu(x):
    return torch.nn.functional.gelu(x, approximate='tanh')

def _silu(x):
    return torch.nn.functional.silu(x)

def _sigmoid(x):
    return torch.sigmoid(x)

def _layernorm(x, axis=-1, eps=1e-05):
    m = x.mean(dim=axis, keepdim=True)
    v = x.var(dim=axis, keepdim=True, unbiased=False)
    return (x - m) / torch.sqrt(v + eps)

def _scatter_add(tgt, idx, src, axis=0):
    return tgt.clone().index_add_(axis, idx, src)

def _segment_sum(src, seg, n):
    out = torch.zeros((n,) + src.shape[1:], dtype=src.dtype)
    return out.index_add_(0, seg, src)

def _pad(x, pw):
    flat = tuple((v for pair in reversed(pw) for v in pair))
    return torch.nn.functional.pad(x, flat)
kernel_name = 'adaLN_cond__sliding_block_cached__mixer_channel_mlp__decode'

def setup_inputs():

    _w = lambda a: (lambda t: t.to(torch.bfloat16) if t.is_floating_point() else t)(torch.as_tensor(a))

    def _A_setup():
        B, Sq, D = (2, 1, 1024)
        Hq, Hkv, Sk, Dh = (32, 4, 32768, 128)
        assert Hq % Hkv == 0, (Hq, Hkv)
        return {'x': _w((lambda *s: torch.randn(*s, dtype=torch.bfloat16) * 0.05)(B, Sq, D)), 'k_cache': _w((lambda *s: torch.randn(*s, dtype=torch.bfloat16) * 3.2)(B, Hkv, Sk, Dh)), 'v_cache': _w((lambda *s: torch.randn(*s, dtype=torch.bfloat16) * 0.4)(B, Hkv, Sk, Dh)), 'wq': _w((lambda *s: torch.randn(*s, dtype=torch.bfloat16) * 3.2)(D, Hq * Dh) * D ** (-0.5)), 'wo': _w((lambda *s: torch.randn(*s, dtype=torch.bfloat16) * 0.4)(Hq * Dh, D) * (Hq * Dh) ** (-0.5))}
    _A_in = _A_setup()

    def _B_setup():
        B, S, D, F = (2, 1, 1024, 3584)
        return {'x': _w((lambda *s: torch.randn(*s, dtype=torch.bfloat16) * 0.05)(B, S, D)), 'w1': _w((lambda *s: torch.randn(*s, dtype=torch.bfloat16) * 3.2)(D, F) * D ** (-0.5)), 'b1': _w((lambda *s: torch.randn(*s, dtype=torch.bfloat16) * 3.2)(F)), 'w2': _w((lambda *s: torch.randn(*s, dtype=torch.bfloat16) * 0.2)(F, D) * F ** (-0.5)), 'b2': _w((lambda *s: torch.randn(*s, dtype=torch.bfloat16) * 0.4)(D))}
    _B_in = _B_setup()
    return {'A_x': _A_in['x'], 'A_k_cache': _A_in['k_cache'], 'A_v_cache': _A_in['v_cache'], 'A_wq': _A_in['wq'], 'A_wo': _A_in['wo'], 'B_x': _B_in['x'], 'B_w1': _B_in['w1'], 'B_b1': _B_in['b1'], 'B_w2': _B_in['w2'], 'B_b2': _B_in['b2'], 'c': _w((lambda *s: torch.randn(*s, dtype=torch.bfloat16) * 0.2)(2, 1024) * 8.0), 'w_mod': _w((lambda *s: torch.randn(*s, dtype=torch.bfloat16) * 0.2)(1024, 6 * 1024) * 1024 ** (-0.5) * 8.0)}

def reference(A_x, A_k_cache, A_v_cache, A_wq, A_wo, B_x, B_w1, B_b1, B_w2, B_b2, c, w_mod):

    def _A_ref(x, k_cache, v_cache, wq, wo):
        B, Sq, D = x.shape
        Hq, Dh = (32, 128)
        Hkv, Sk = (k_cache.shape[1], k_cache.shape[2])
        W = min(4096, max(256, Sk // 4))
        rep = Hq // Hkv
        q = (lambda x, *d: x.permute(*d))((x @ wq).reshape(B, Sq, Hq, Dh), 0, 2, 1, 3)
        k = (lambda x, n, axis: torch.repeat_interleave(x, n, dim=axis))(k_cache[:, :, Sk - W:, :], rep, axis=1)
        v = (lambda x, n, axis: torch.repeat_interleave(x, n, dim=axis))(v_cache[:, :, Sk - W:, :], rep, axis=1)
        scores = torch.einsum('bhqd,bhkd->bhqk', q, k) * Dh ** (-0.5)
        p = _softmax(scores, axis=-1)
        o = torch.einsum('bhqk,bhkd->bhqd', p, v)
        return (lambda x, *d: x.permute(*d))(o, 0, 2, 1, 3).reshape(B, Sq, Hq * Dh) @ wo

    def _B_ref(x, w1, b1, w2, b2):
        y = _layernorm(x, axis=-1)
        h = _gelu(torch.einsum('bsd,df->bsf', y, w1) + b1)
        return torch.einsum('bsf,fd->bsd', h, w2) + b2
    x = A_x
    mod = (_silu(c) @ w_mod).reshape(c.shape[0], 6, 1, -1)
    sa, ca, ga, sb, cb, gb = (mod[:, 0].clone(), mod[:, 1].clone(), mod[:, 2].clone(), mod[:, 3].clone(), mod[:, 4].clone(), mod[:, 5].clone())
    h = _layernorm(x, axis=-1) * (1 + ca) + sa
    x = x + ga * _A_ref(h, A_k_cache, A_v_cache, A_wq, A_wo)
    h = _layernorm(x, axis=-1) * (1 + cb) + sb
    x = x + gb * _B_ref(h, B_w1, B_b1, B_w2, B_b2)
    return x
```

```python
import re

TRANS = ("v_exp_f32", "v_log_f32", "v_rcp_f32", "v_rsq_f32", "v_sqrt_f32", "v_sin_f32", "v_cos_f32")

def split_ops(s):
    out, depth, cur = [], 0, ""
    for ch in s:
        if ch == "[": depth += 1
        if ch == "]": depth -= 1
        if ch == "," and depth == 0:
            out.append(cur.strip()); cur = ""
        else:
            cur += ch
    if cur.strip(): out.append(cur.strip())
    return out

def regs_of(tok):
    tok = tok.strip()
    w = tok.split()[0] if tok else ""
    w = w.lstrip("-")
    m = re.match(r"abs\((.*)\)$", w)
    if m: w = m.group(1)
    w = w.strip("|")
    m = re.match(r"^([vs])(\d+)$", w)
    if m: return {(m.group(1), int(m.group(2)))}
    m = re.match(r"^([vs])\[(\d+):(\d+)\]$", w)
    if m: return {(m.group(1), i) for i in range(int(m.group(2)), int(m.group(3)) + 1)}
    if w in ("vcc", "vcc_lo", "vcc_hi"): return {("vcc", 0)}
    if w in ("exec", "exec_lo", "exec_hi"): return {("exec", 0)}
    if w == "m0": return {("m0", 0)}
    return set()

class Ins:
    __slots__ = ("mn", "cls", "dst", "src", "states", "dpp", "wide_store_data", "srcC", "text")

class G:
    def __init__(self):
        self.lines = []
        self.hist = []
        self.vm = []
        self.lg = []
        self.nlabel = 0
        self.count = 0

    def raw(self, s): self.lines.append(s)
    def comment(self, s): self.lines.append("; " + s)
    def label(self, name):
        self.lines.append(name + ":")
    def newlabel(self, stem="L"):
        self.nlabel += 1
        return f"{stem}_{self.nlabel}"

    def classify(self, text):
        I = Ins(); I.text = text
        parts = text.split(None, 1)
        mn = parts[0]; rest = parts[1] if len(parts) > 1 else ""
        mn0 = re.sub(r"_(e32|e64|dpp|sdwa)$", "", mn)
        I.mn = mn0
        ops = split_ops(rest)
        I.dpp = ("_dpp" in mn) or any(k in rest for k in ("row_ror", "row_shr", "row_shl", "quad_perm", "row_bcast", "row_mirror", "row_half_mirror"))
        I.states = 1; I.wide_store_data = set(); I.srcC = set()
        dst, src = set(), set()
        R = [regs_of(o) for o in ops]
        if mn0 == "s_nop":
            I.cls = "nop"; I.states = int(rest, 0) + 1
        elif mn0.startswith("v_mfma"):
            I.cls = "mfma"; dst = R[0]; src = R[1] | R[2] | R[3]; I.srcC = R[3]
        elif mn0.startswith("v_cmp"):
            I.cls = "valu"; dst = R[0]; src = set().union(*R[1:])
        elif mn0 in ("v_readfirstlane_b32", "v_readlane_b32"):
            I.cls = "valu"; dst = R[0]; src = set().union(*R[1:])
        elif mn0.startswith("v_permlane"):
            I.cls = "valu"; dst = R[0] | R[1]; src = R[0] | R[1]
        elif mn0 in ("v_add_co_u32", "v_addc_co_u32", "v_sub_co_u32", "v_subb_co_u32"):
            I.cls = "valu"; dst = R[0] | R[1]; src = set().union(*R[2:])
        elif mn0 in ("v_fmac_f32", "v_dot2c_f32_bf16", "v_writelane_b32"):
            I.cls = "valu"; dst = R[0]; src = set().union(*R)
        elif mn0.startswith("v_cndmask"):
            I.cls = "valu"; dst = R[0]; src = set().union(*R[1:])
            if len(ops) == 3: src |= {("vcc", 0)}
        elif mn0.startswith("v_"):
            I.cls = "valu"; dst = R[0]; src = set().union(*R[1:]) if len(R) > 1 else set()
            if I.dpp: src |= R[0]
        elif mn0.startswith("global_load_lds") or (mn0.startswith("buffer_load") and " lds" in rest):
            I.cls = "vmem"; src = set().union(*R) | {("m0", 0)}
        elif mn0.startswith("global_load") or mn0.startswith("buffer_load"):
            I.cls = "vmem"; dst = R[0]; src = set().union(*R[1:])
        elif mn0.startswith("global_store") or mn0.startswith("buffer_store"):
            I.cls = "vmem"; src = set().union(*R)
            if "x4" in mn0 or "x3" in mn0:
                I.wide_store_data = R[1] if mn0.startswith("global") else R[0]
        elif mn0.startswith("global_atomic"):
            I.cls = "vmem"; src = set().union(*R)
        elif mn0.startswith("ds_read") or mn0.startswith("ds_bpermute") or mn0.startswith("ds_swizzle"):
            I.cls = "ds"; dst = R[0]; src = set().union(*R[1:])
        elif mn0.startswith("ds_"):
            I.cls = "ds"; src = set().union(*R)
        elif mn0.startswith("s_load") or mn0.startswith("s_memtime") or mn0.startswith("s_memrealtime"):
            I.cls = "smem"; dst = R[0]; src = set().union(*R[1:]) if len(R) > 1 else set()
        elif mn0.startswith("s_cmp") or mn0.startswith("s_cbranch") or mn0 in ("s_branch", "s_waitcnt", "s_barrier", "s_sleep", "s_setprio", "s_endpgm", "s_setpc_b64", "s_bitcmp1_b32", "s_bitcmp0_b32"):
            I.cls = "salu"; src = set().union(*R) if R else set()
        elif mn0.startswith("s_"):
            I.cls = "salu"; dst = R[0] if R else set(); src = set().union(*R[1:]) if len(R) > 1 else set()
            if "saveexec" in mn0: dst = dst | {("exec", 0)}
        else:
            raise ValueError("unknown instr " + text)
        I.dst, I.src = dst, src
        return I

    def need(self, P, I):
        n = 0
        isv = lambda s: {r for r in s if r[0] == "v"}
        iss = lambda s: {r for r in s if r[0] in ("s", "vcc")}
        if P.cls == "valu":
            pv = isv(P.dst); ps = iss(P.dst)
            if I.cls == "mfma" and pv & I.src: n = max(n, 2)
            if I.cls == "valu":
                if I.mn.startswith("v_permlane") and pv & I.src: n = max(n, 2)
                if I.dpp and pv & I.src: n = max(n, 2)
                if I.mn in ("v_readfirstlane_b32", "v_readlane_b32") and pv & I.src: n = max(n, 1)
                if P.mn in TRANS and I.mn not in TRANS and pv & I.src: n = max(n, 1)
                if P.mn in TRANS and I.mn in TRANS and pv & I.src: n = max(n, 1)
                if ps & I.src:
                    n = max(n, 2)
                    if I.mn in ("v_readlane_b32", "v_writelane_b32"): n = max(n, 4)
            if I.cls == "vmem" and ps & I.src: n = max(n, 5)
            if I.cls in ("vmem", "ds") and P.mn in TRANS and pv & I.src: n = max(n, 1)
            if I.cls == "salu" and ps & I.src: n = max(n, 1)
        if P.cls == "mfma":
            d = P.dst
            if I.cls == "mfma":
                if d & I.srcC and not (d == I.srcC): n = max(n, 6)
                ab = I.src - I.srcC if d != I.srcC else (I.src - I.srcC)
                if d & ab: n = max(n, 8)
                if d == I.srcC:
                    pass
            elif I.cls in ("valu", "vmem", "ds"):
                if d & (I.src | I.dst): n = max(n, 8)
            if I.cls == "valu" and (P.srcC & I.dst): n = max(n, 3)
        if P.cls == "salu":
            if ("m0", 0) in P.dst and I.cls == "vmem" and ("m0", 0) in I.src: n = max(n, 1)
        if P.cls == "vmem" and P.wide_store_data:
            if I.cls == "valu" and P.wide_store_data & I.dst: n = max(n, 2)
            elif P.wide_store_data & I.dst: n = max(n, 1)
        return n

    def emit(self, text):
        I = self.classify(text)
        dist = 0; needed = 0
        for P in reversed(self.hist):
            r = self.need(P, I)
            if r > dist: needed = max(needed, r - dist)
            dist += P.states
            if dist >= 12: break
        if needed > 0:
            k = needed
            while k > 0:
                c = min(k, 16)
                nop = self.classify(f"s_nop {c-1}")
                self.lines.append(f"  s_nop {c-1}")
                self.hist.append(nop); k -= c
        self.lines.append("  " + text)
        self.hist.append(I)
        self.hist = self.hist[-16:]
        self.count += 1
        return I

    def __call__(self, text, vm=None, lg=None):
        I = self.emit(text)
        if I.cls == "vmem":
            if vm != "opt": self.vm.append(vm if vm is not None else "_")
        elif I.cls == "ds":
            if lg != "opt": self.lg.append(lg if lg is not None else "_")
        elif I.cls == "smem":
            self.lg.append("SMEM")
        return I

    def flush_hazards(self, n=8):
        self.emit(f"s_nop {n-1}")

    def wait_vm(self, tag=None, extra=""):
        if tag is None:
            self.emit("s_waitcnt vmcnt(0)"); self.vm = []; return
        idx = max((i for i, t in enumerate(self.vm) if t == tag), default=None)
        if idx is None:
            return
        n = len(self.vm) - 1 - idx
        assert n <= 63, n
        self.emit(f"s_waitcnt vmcnt({n})")
        self.vm = self.vm[idx + 1:]

    def wait_lg(self, tag=None):
        if tag is None or "SMEM" in self.lg:
            self.emit("s_waitcnt lgkmcnt(0)"); self.lg = []; return
        idx = max((i for i, t in enumerate(self.lg) if t == tag), default=None)
        if idx is None: return
        n = len(self.lg) - 1 - idx
        if n > 15:
            n = 15
        self.emit(f"s_waitcnt lgkmcnt({n})")
        self.lg = self.lg[len(self.lg) - n:] if n else []

    def barrier(self):
        self.wait_lg(None)
        self.emit("s_barrier")

    def save_state(self): return (list(self.vm), list(self.lg), list(self.hist))
    def restore_state(self, st): self.vm, self.lg, self.hist = list(st[0]), list(st[1]), list(st[2])

    def text(self): return "\n".join(self.lines) + "\n"

class RegAlloc:
    def __init__(self, prefix, start, limit):
        self.p, self.n, self.limit = prefix, start, limit
        self.hi = start
    def one(self):
        r = self.n; self.n += 1; self.hi = max(self.hi, self.n); assert self.n <= self.limit, "out of regs"
        return f"{self.p}{r}"
    def rng(self, k, align=None):
        align = align or (2 if k > 1 else 1)
        if self.p == "s" and k >= 4 and align < 4: align = 4
        self.n = (self.n + align - 1) // align * align
        r = self.n; self.n += k; self.hi = max(self.hi, self.n); assert self.n <= self.limit, "out of regs"
        return Rng(self.p, r, k)
    def mark(self): return self.n
    def release(self, m): self.n = m

class Rng:
    def __init__(self, p, base, k): self.p, self.base, self.k = p, base, k
    def __str__(self): return f"{self.p}[{self.base}:{self.base+self.k-1}]"
    def __getitem__(self, i):
        if isinstance(i, slice):
            a = i.start or 0; b = i.stop
            return Rng(self.p, self.base + a, b - a)
        return f"{self.p}{self.base + i}"
```

```python
import sys, struct
from asmlib import *
import numpy as np

KNAME = "adaLN_cond__sliding_block_cached__mixer_channel_mlp__decode_kernel"
def f2u(x): return struct.unpack("<I", struct.pack("<f", x))[0]
def hx(x): return "0x%08x" % (x & 0xffffffff)

WS_EPOCH = 0
WS_DBG = 0x500000
WS_FLAG = 0x20000
WS_BLK = 0x100000
BS = 12416
F_PA, F_PQ, F_PM, F_PO, F_PF1, F_PF2, F_PS, F_PST = 0, 512, 1536, 2560, 4608, 5632, 7680, 11776
F_PR, F_PRST, F_PC1, F_PSB = 4608, 4736, 4864, 4992
MISC, RA, R0, R1, R2, R3 = 0, 12288, 28672, 61440, 94208, 126976
XA = 0; XQ = XA + 576; QS = XQ + 576; PP = QS + 2176; MX = PP + 2176; LS = MX + 256; ST = LS + 256
XO = ST + 64; XF = XO + 288; XF2 = XF + 1056; ST2 = XF2 + 288
SENT_END = 8192
PSUM = 0
PS0 = 8192 - 0
CNT = 8192
PROG = CNT
L_A, L_WQ, L_K, L_V, L_CLR, L_WO, L_M, L_W1, L_W2 = 18, 50, 82, 114, 124, 156, 188, 220, 252
FR_WQ, FR_K, FR_V = CNT + 64, CNT + 68, CNT + 72
PAUSE = CNT + 88
DBGL = 8448
assert ST2 + 128 <= SENT_END
LDS_BYTES = 160 * 1024
PSA = [RA, RA + 2048, RA + 4096]
assert R3 + 32768 <= LDS_BYTES and DBGL + 9 * 256 <= RA

LOG2E = 1.4426950408889634
LOG2E_HI = f2u(LOG2E)
LOG2E_LO = f2u(float(LOG2E - float(np.float32(LOG2E))))
LN2 = f2u(0.6931471805599453)
SCALE = f2u(128 ** -0.5)

class Cfg:
    stop = None
    prof = False
    keep = ()
    delays = dict(Q=0, S=18, O=22, R=16, F1=3, F2=7, Rf=88, M8=12, F1w=60, back=3, FL3=4, R4b=2)
    trig = dict(FL=14, Q=24, S=10, O=20, F1=12, F2=12)
    retry_limit = 1 << 14
    depth = 16
    pumponly = False
    noclear = False
    startq = 8
    dlow = 4
    pause_after = ()
    yield_ = True
    lead = 12
    lead_for = ('G2', 'G3')
    hints = False
    skew = False
    spin_sleep = 0
    prio = 0
    pump_prio = 0
    scramble = False
    skew_for = ('G2',)
    codepf = True
    hdelay = {}
    pace = 4
    serial = False
    cap = 48
    spinonly = 0

def build(cfg=Cfg):
    g = G()
    V = RegAlloc("v", 1, 166)
    sW, sV, sTag, sHi, sLo = "s2", "s4", "s5", "s6", "s7"
    sT0, sT1, sT2, sT3 = "s8", "s9", "s10", "s11"
    sTry = "s12"; sT4 = "s13"; sT5 = "s14"; sT6 = "s15"
    pX, pK, pV, pWq, pWo, pBx, pW1, pB1 = [Rng("s", 16 + 2 * i, 2) for i in range(8)]
    pW2, pB2, pC, pWm = [Rng("s", 32 + 2 * i, 2) for i in range(4)]
    pOut, pDbg, pWs = Rng("s", 40, 2), Rng("s", 42, 2), Rng("s", 44, 2)
    pBlk, pOwn = Rng("s", 46, 2), Rng("s", 48, 2)
    pA = Rng("s", 50, 2)
    pB16 = Rng("s", 26, 2)
    sC1, sC2, sC3 = "s68", "s69", "s70"
    sR = "s73"; sP1, sNg = "s74", "s75"
    sTry2 = "s78"; sRow0 = "s79"; sIt = "s80"; sX = "s81"; sI = "s82"; sTl = "s83"
    stamps = []
    vDbgA, vDbgV = "v166", "v167"

    def stamp(name, val=None):
        if not cfg.prof: return
        if cfg.prof == 1 and name not in cfg.keep: return
        i = len(stamps)
        assert i < 63
        if val is None:
            g("s_memrealtime s[100:101]")
            g.wait_lg(None)
            val = "s100"
        g(f"v_mov_b32 {vDbgV}, {val}")
        g("s_mov_b64 s[76:77], exec")
        g("s_mov_b64 exec, 1")
        g(f"ds_write_b32 {vDbgA}, {vDbgV} offset:{DBGL + 4*i}", lg="opt")
        g("s_mov_b64 exec, s[76:77]")
        stamps.append(name)

    def bf16r(dst, src):
        g(f"v_cvt_pk_bf16_f32 {dst}, {src}, {src}")
        g(f"v_lshlrev_b32 {dst}, 16, {dst}")
    def row_allreduce(op, x, steps=(8, 4, 2, 1)):
        for n in steps:
            g(f"{op}_dpp {x}, {x}, {x} row_ror:{n} row_mask:0xf bank_mask:0xf")
    def xrow16(op, x, t):
        g(f"v_mov_b32 {t}, {x}")
        g(f"v_permlane16_swap_b32 {x}, {t}")
        g(f"{op} {x}, {x}, {t}")
    def xrow32(op, x, t):
        g(f"v_mov_b32 {t}, {x}")
        g(f"v_permlane32_swap_b32 {x}, {t}")
        g(f"{op} {x}, {x}, {t}")
    def add64(dst, base, off):
        g(f"s_add_u32 {dst[0]}, {base[0]}, {off}")
        g(f"s_addc_u32 {dst[1]}, {base[1]}, 0")
    def set_exec(mask):
        if mask == -1:
            g("s_mov_b64 exec, -1")
        elif mask < 0x80000000 :
            g(f"s_mov_b64 exec, {hx(mask)}" if mask > 64 else f"s_mov_b64 exec, {mask}")
        else:
            g(f"s_mov_b32 exec_lo, {hx(mask & 0xffffffff)}")
            g(f"s_mov_b32 exec_hi, {hx(mask >> 32)}")
    def exit_here(stage): return cfg.stop == stage

    g.raw(f"; @launch grid=(256,1,1) block=(576,1,1) lds={LDS_BYTES}")
    g.raw('.amdgcn_target "amdgcn-amd-amdhsa--gfx950"')
    g.raw(".text")
    g.raw(f".globl {KNAME}")
    g.raw(".p2align 8")
    g.raw(f".type {KNAME},@function")
    g.raw(f"{KNAME}:")

    g("s_load_dwordx16 s[16:31], s[0:1], 0")
    g("s_load_dwordx8 s[32:39], s[0:1], 64")
    g("s_load_dwordx4 s[40:43], s[0:1], 96")
    g("s_load_dwordx2 s[44:45], s[0:1], 112")
    g(f"s_cmp_ge_u32 {sW}, 256")
    g("s_cbranch_scc1 L_exit")
    if cfg.scramble:
        g(f"s_lshr_b32 s3, {sW}, 3")
        g("s_and_b32 s3, s3, 7")
        g(f"s_xor_b32 {sW}, {sW}, s3")
    vL = V.one(); vL16 = V.one(); vG = V.one()
    vT = [V.one() for _ in range(8)]
    vZero = V.one()
    vT16 = V.one(); vR = V.one(); vC8 = V.one(); vRow = V.one(); vR8 = V.one()
    vTrA = V.one(); vTr1 = V.one(); vTr256 = V.one(); vTrV = V.one(); vTr512 = V.one()
    vX272 = V.one(); vQ272 = V.one(); vX144 = V.one(); vX528 = V.one(); vSt8 = V.one(); vSt2 = V.one()
    vKrd = V.one(); vLnx = V.one(); vLd = V.one(); vBq = V.one(); vColq = V.one()
    vB = V.rng(16, 4); vA = V.rng(16, 4); vD = V.rng(4, 4); vD2 = V.rng(4, 4); gl = V.rng(16, 4)
    m_stage = V.mark()
    g(f"v_and_b32 {vL}, 63, v0")
    g(f"v_lshrrev_b32 {vT[0]}, 6, v0")
    g(f"v_readfirstlane_b32 {sV}, {vT[0]}")
    if cfg.codepf:
        g("s_getpc_b64 s[14:15]")
        g.label("L_pc0")
        g(f"s_bfe_u32 {sT2}, {sW}, 0x10003")
        g(f"s_mul_i32 {sT2}, {sT2}, 9")
        g(f"s_add_u32 {sT2}, {sT2}, {sV}")
        g(f"s_lshl_b32 {sT2}, {sT2}, 10")
        g(f"s_add_u32 s14, s14, {sT2}")
        g(f"s_addc_u32 s15, s15, 0")
        g(f"v_lshlrev_b32 {vT[1]}, 4, {vL}")
        g(f"s_cmp_le_u32 {sT2}, L_codeend-L_pc0-1024")
        g("s_cbranch_scc0 L_nopf")
        g(f"global_load_dwordx4 {gl[12:16]}, {vT[1]}, s[14:15]", vm="opt")
        g.label("L_nopf")
    if cfg.prof:
        g(f"v_lshlrev_b32 {vDbgA}, 8, {vT[0]}")
        g("s_memrealtime s[100:101]")
        g.emit("s_waitcnt lgkmcnt(0)"); g.lg = []
        g(f"v_mov_b32 {vDbgV}, s100")
        g("s_mov_b64 exec, 1")
        g(f"ds_write_b32 {vDbgA}, {vDbgV} offset:{DBGL}", lg="opt")
        g("s_mov_b64 exec, -1")
        stamps.append("start")
    if cfg.skew: g("s_memrealtime s[96:97]")
    g(f"v_and_b32 {vL16}, 15, {vL}")
    g(f"v_lshrrev_b32 {vG}, 4, {vL}")
    g(f"v_mov_b32 {vZero}, 0")
    g(f"s_lshr_b32 {sHi}, {sW}, 5")
    g(f"s_and_b32 {sLo}, {sW}, 31")
    g(f"s_and_b32 {sX}, {sW}, 7")
    g(f"s_lshr_b32 {sI}, {sW}, 3")
    g(f"s_lshl_b32 {sTl}, {sX}, 5")
    g(f"s_add_u32 {sTl}, {sTl}, {sI}")
    g(f"s_cmp_eq_u32 {sV}, 8")
    g("s_cbranch_scc0 L_compute")
    st_pump = g.save_state()
    idx_c0 = len(g.lines)
    g.label("L_compute")

    g(f"v_lshlrev_b32 {vT16}, 4, v0")
    sv = V.rng(4, 4)
    g(f"v_subrev_u32 {vT[0]}, {MX}, {vT16}")
    g(f"v_cmp_gt_u32 vcc, 256, {vT[0]}")
    g(f"v_mov_b32 {vT[1]}, 0x7f800000")
    g(f"v_cndmask_b32 {sv[0]}, -1, {vT[1]}, vcc")
    for i in range(1, 4): g(f"v_mov_b32 {sv[i]}, {sv[0]}")
    g(f"ds_write_b128 {vT16}, {sv}")
    g.wait_lg(None)
    g(f"s_load_dword {sTag}, {pWs}, {WS_EPOCH}")
    g.emit("s_barrier")
    if cfg.pumponly and not cfg.spinonly: g("s_branch L_end")
    vC = V.one(); vXs = V.rng(2); vXu = V.one()
    g(f"v_and_b32 {vT[0]}, 127, v0")
    g(f"v_bfe_u32 {vT[1]}, v0, 7, 1")
    g(f"v_lshlrev_b32 {vT[2]}, 11, {vT[1]}")
    g(f"v_lshl_add_u32 {vT[2]}, {vT[0]}, 1, {vT[2]}")
    g(f"s_lshl_b32 {sT2}, {sHi}, 8")
    g(f"v_add_u32 {vT[2]}, {sT2}, {vT[2]}")
    g(f"global_load_ushort {vC}, {vT[2]}, {pC}", vm="c")
    g(f"v_lshlrev_b32 {vT[3]}, 3, v0")
    g(f"global_load_dwordx2 {vXs}, {vT[3]}, {pX}", vm="x")
    vXAw = V.one()
    g(f"v_mul_u32_u24 {vXAw}, 272, {vT[1]}")
    g(f"v_lshl_add_u32 {vXAw}, {vT[0]}, 1, {vXAw}")
    g(f"s_lshl_b32 {sRow0}, {sX}, 7")
    g(f"s_lshl_b32 {sT2}, {sV}, 4")
    g(f"s_add_u32 {sRow0}, {sRow0}, {sT2}")
    g(f"v_and_b32 {vBq}, 1, {vG}")
    g(f"v_and_b32 {vT[4]}, 7, {vL}")
    g(f"v_lshlrev_b32 {vT[4]}, 1, {vT[4]}")
    g(f"v_lshrrev_b32 {vT[5]}, 5, {vL}")
    g(f"v_add_u32 {vColq}, {vT[4]}, {vT[5]}")
    g(f"v_add_u32 {vT[4]}, {sRow0}, {vColq}")
    g(f"v_lshlrev_b32 {vT[4]}, 1, {vT[4]}")
    g(f"v_lshl_add_u32 {vT[4]}, {vBq}, 11, {vT[4]}")
    g(f"global_load_ushort {vXu}, {vT[4]}, {pX}", vm="x")
    add64(pBlk, pWs, WS_BLK)
    g(f"s_mul_i32 {sT2}, {sW}, {BS}")
    add64(pOwn, pBlk, sT2)
    g(f"v_bfe_u32 {vR}, {vL}, 2, 2")
    g(f"v_and_b32 {vC8}, 3, {vL}")
    g(f"v_lshlrev_b32 {vC8}, 3, {vC8}")
    g(f"v_lshl_add_u32 {vRow}, {vG}, 3, {vR}")
    g(f"v_lshrrev_b32 {vR8}, 3, {vL}")
    g(f"v_lshrrev_b32 {vT[0]}, 1, {vR}")
    g(f"v_and_b32 {vT[1]}, 1, {vG}")
    g(f"v_lshl_or_b32 {vT[0]}, {vT[1]}, 1, {vT[0]}")
    g(f"s_and_b32 {sT2}, {sV}, 3")
    g(f"v_xor_b32 {vT[0]}, {sT2}, {vT[0]}")
    g(f"v_lshl_add_u32 {vT[0]}, {vT[0]}, 5, {vC8}")
    g(f"v_lshl_add_u32 {vTrA}, {vRow}, 7, {vT[0]}")
    g(f"v_and_b32 {vT[0]}, 1, {vL}")
    g(f"v_lshlrev_b32 {vT[2]}, 4, {vG}")
    g(f"s_movk_i32 {sT0}, 272")
    g(f"v_mad_u32_u24 {vX272}, {vT[0]}, {sT0}, {vT[2]}")
    g(f"v_lshlrev_b32 {vSt8}, 3, {vL}")
    stamp("pro")

    a, b_, c_, d_ = vT[0], vT[1], vT[2], vT[3]
    g(f"s_mov_b32 {sC1}, {hx(LOG2E_HI | 0x80000000)}")
    g(f"s_mov_b32 {sC2}, {hx(LOG2E_LO | 0x80000000)}")
    g(f"s_mov_b32 {sC3}, {hx(LN2)}")
    g.wait_vm("c")
    g(f"v_lshlrev_b32 {vC}, 16, {vC}")
    g(f"v_mul_f32 {a}, {sC1}, {vC}")
    g(f"v_fma_f32 {b_}, {vC}, {sC1}, -{a}")
    g(f"v_fma_f32 {b_}, {vC}, {sC2}, {b_}")
    g(f"v_exp_f32 {a}, {a}")
    g(f"v_mul_f32 {b_}, {a}, {b_}")
    g(f"v_fma_f32 {a}, {b_}, {sC3}, {a}")
    g(f"v_add_f32 {a}, 1.0, {a}")
    g(f"v_rcp_f32 {b_}, {a}")
    g(f"v_mul_f32 {c_}, {vC}, {b_}")
    g(f"v_fma_f32 {d_}, -{c_}, {a}, {vC}")
    g(f"v_fma_f32 {c_}, {d_}, {b_}, {c_}")
    g(f"v_cvt_pk_bf16_f32 {c_}, {c_}, {c_}")
    g(f"ds_write_b16 {vXAw}, {c_} offset:{XA}")

    def wait_flag(addr, name, val=1, sleep=0):
        L = g.newlabel("L_wf"); Lo = L + "_o"
        g(f"s_mov_b32 {sTry2}, 0")
        g.label(L)
        g(f"ds_read_b32 {vLd}, {vZero} offset:{addr}")
        g.wait_lg(None)
        g(f"v_readfirstlane_b32 {sT6}, {vLd}")
        g(f"s_cmp_ge_u32 {sT6}, {val}")
        g(f"s_cbranch_scc1 {Lo}")
        if sleep: g(f"s_sleep {sleep}")
        g(f"s_add_u32 {sTry2}, {sTry2}, 1")
        g(f"s_cmp_lt_u32 {sTry2}, {1 << 20}")
        g(f"s_cbranch_scc1 {L}")
        g.label(Lo)
    def wait_prog(thr, sleep=1): wait_flag(PROG, "P", thr, sleep)
    def signal_free(addr):
        g(f"v_mov_b32 {vLd}, 1")
        set_exec(1)
        g(f"ds_add_u32 {vZero}, {vLd} offset:{addr}", lg="opt")
        set_exec(-1)
    def set_pause(val):
        if not cfg.yield_: return
        L = g.newlabel("L_sp")
        g(f"s_cmp_eq_u32 {sV}, 0")
        g(f"s_cbranch_scc0 {L}")
        g(f"v_mov_b32 {vLd}, {val}")
        set_exec(1)
        g(f"ds_write_b32 {vZero}, {vLd} offset:{PAUSE}", lg="opt")
        set_exec(-1)
        g.label(L)
    def tr_reads(dst16, vaddr, nsteps, step_off, half_off, base_off=0, tag="w"):
        for s in range(nsteps):
            g(f"ds_read_b64_tr_b16 {dst16[4*s:4*s+2]}, {vaddr} offset:{base_off + s*step_off}", lg=tag)
            g(f"ds_read_b64_tr_b16 {dst16[4*s+2:4*s+4]}, {vaddr} offset:{base_off + s*step_off + half_off}", lg=tag)
    def x_reads(dst16, vaddr, nsteps, base_off, tag="x"):
        for s in range(nsteps):
            g(f"ds_read_b128 {dst16[4*s:4*s+4]}, {vaddr} offset:{base_off + s*64}", lg=tag)
    def mfma_chain(D, A16, B16, nsteps):
        for s in range(nsteps):
            cin = "0" if s == 0 else str(D)
            g(f"v_mfma_f32_16x16x32_bf16 {D}, {A16[4*s:4*s+4]}, {B16[4*s:4*s+4]}, {cin}")
    def lds_retry(name, body):
        L = f"L_{name}_lr"; Lo = f"L_{name}_lo"
        g(f"s_mov_b32 {sTry2}, 0")
        g.label(L)
        body()
        g(f"s_cbranch_vccz {Lo}")
        if cfg.spin_sleep: g(f"s_sleep {cfg.spin_sleep}")
        g(f"s_add_u32 {sTry2}, {sTry2}, 1")
        g(f"s_cmp_lt_u32 {sTry2}, {cfg.retry_limit * 8}")
        g(f"s_cbranch_scc1 {L}")
        g.label(Lo)
        g.flush_hazards(1)

    g.wait_vm("x")
    x0, x1, x2_, x3 = vT[0], vT[1], vT[2], vT[3]
    g(f"v_lshlrev_b32 {x0}, 16, {vXs[0]}")
    g(f"v_and_b32 {x1}, 0xffff0000, {vXs[0]}")
    g(f"v_lshlrev_b32 {x2_}, 16, {vXs[1]}")
    g(f"v_and_b32 {x3}, 0xffff0000, {vXs[1]}")
    s1, s2 = vT[4], vT[5]
    g(f"v_add_f32 {s1}, {x0}, {x1}")
    g(f"v_mul_f32 {s2}, {x0}, {x0}")
    g(f"v_add_f32 {s1}, {s1}, {x2_}")
    g(f"v_fmac_f32 {s2}, {x1}, {x1}")
    g(f"v_add_f32 {s1}, {s1}, {x3}")
    g(f"v_fmac_f32 {s2}, {x2_}, {x2_}")
    g(f"v_fmac_f32 {s2}, {x3}, {x3}")
    g(f"v_permlane32_swap_b32 {s1}, {s2}")
    g(f"v_add_f32 {s1}, {s1}, {s2}")
    xrow16("v_add_f32", s1, vT[6])
    row_allreduce("v_add_f32", s1)
    g(f"v_lshrrev_b32 {vT[6]}, 5, {vL}")
    g(f"v_lshlrev_b32 {vT[6]}, 2, {vT[6]}")
    g(f"s_lshl_b32 {sT2}, {sV}, 3")
    g(f"v_add_u32 {vT[6]}, {sT2}, {vT[6]}")
    set_exec(0x100000001)
    g(f"ds_write_b32 {vT[6]}, {s1} offset:{ST}")
    set_exec(-1)

    def emit_stage_A():
        g(f"s_cmp_lt_u32 {sV}, 4")
        g("s_cbranch_scc0 L_A_done")
        st = g.save_state()
        wait_prog(L_A, 0)
        stamp("LA")
        tr_reads(vB, vTrA, 4, 4096, 512, RA)
        def a_body():
            x_reads(vA, vX272, 4, XA)
            g.wait_lg(None)
            mfma_chain(vD, vA, vB, 4)
            g(f"v_cmp_u_f32 vcc, {vD[0]}, {vD[1]}")
        lds_retry("A", a_body)
        g(f"s_lshl_b32 {sT2}, {sV}, 7")
        g(f"v_add_u32 {vT[0]}, {sT2}, {vSt8}")
        set_exec(0xffff)
        g(f"global_store_dwordx2 {vT[0]}, {vD[0:2]}, {pOwn} offset:{F_PA} sc1", vm="opt")
        set_exec(-1)
        if cfg.prof and (cfg.prof != 1 or "LA" in cfg.keep):
            g("s_branch L_A_done2")
            g.label("L_A_done")
            stamps.pop(); stamp("LA")
            g.label("L_A_done2")
        else:
            g.label("L_A_done")
        g.restore_state(st)
        g.flush_hazards(1)
        stamp("A")
    g(f"s_lshr_b32 {sT2}, {sV}, 2")
    g(f"s_lshl_b32 {sT2}, {sT2}, 14")
    g(f"s_add_u32 {sT2}, {sT2}, {R1}")
    g(f"v_add_u32 {vTr1}, {sT2}, {vTrA}")
    g(f"v_and_b32 {vT[1]}, 1, {vG}")
    g(f"v_lshl_or_b32 {vT[2]}, {vT[1]}, 2, {vR}")
    g(f"v_xor_b32 {vT[0]}, {sV}, {vT[2]}")
    g(f"v_lshl_add_u32 {vT[0]}, {vT[0]}, 5, {vC8}")
    g(f"v_lshl_add_u32 {vTr256}, {vRow}, 8, {vT[0]}")
    g(f"v_add_u32 {vTrV}, {R2}, {vTr256}")
    g(f"v_add_u32 {vTr256}, {R0}, {vTr256}")
    g(f"s_lshl_b32 {sT2}, {sV}, 1")
    g(f"v_xor_b32 {vT[0]}, {sT2}, {vT[2]}")
    g(f"v_lshl_add_u32 {vT[0]}, {vT[0]}, 5, {vC8}")
    g(f"v_lshl_add_u32 {vTr512}, {vRow}, 9, {vT[0]}")
    g(f"v_and_b32 {vT[0]}, 1, {vL}")
    g(f"v_lshlrev_b32 {vT[1]}, 4, {vG}")
    g(f"s_movk_i32 {sT0}, 272")
    g(f"v_and_b32 {vT[2]}, 7, {vL}")
    g(f"v_mad_u32_u24 {vQ272}, {vT[2]}, {sT0}, {vT[1]}")
    g(f"s_movk_i32 {sT0}, 144")
    g(f"v_mad_u32_u24 {vX144}, {vT[0]}, {sT0}, {vT[1]}")
    g(f"s_movk_i32 {sT0}, 528")
    g(f"v_mad_u32_u24 {vX528}, {vT[0]}, {sT0}, {vT[1]}")
    g(f"s_lshr_b32 {sT2}, {sV}, 2")
    g(f"s_lshl_b32 {sT2}, {sT2}, 8")
    g(f"v_add_u32 {vX528}, {sT2}, {vX528}")
    g(f"v_xor_b32 {vT[0]}, {vG}, {vL16}")
    g(f"v_lshlrev_b32 {vT[0]}, 4, {vT[0]}")
    g(f"v_lshl_add_u32 {vKrd}, {vL16}, 8, {vT[0]}")
    g(f"s_lshl_b32 {sT2}, {sV}, 12")
    g(f"s_add_u32 {sT2}, {sT2}, {R1}")
    g(f"v_add_u32 {vKrd}, {sT2}, {vKrd}")
    r8 = vA
    def ln_finish(S, S2, mb, sd, t):
        g(f"v_mul_f32 {S}, {hx(f2u(1.0/1024))}, {S}")
        g(f"v_mul_f32 {S2}, {hx(f2u(1.0/1024))}, {S2}")
        g(f"v_fma_f32 {S2}, -{S}, {S}, {S2}")
        bf16r(mb, S)
        bf16r(t, S2)
        g(f"v_add_f32 {t}, {hx(f2u(1e-5))}, {t}")
        bf16r(t, t)
        g(f"v_sqrt_f32 {t}, {t}")
        bf16r(sd, t)
    def div_exact(q, n, d, rcp, t):
        g(f"v_mul_f32 {q}, {n}, {rcp}")
        g(f"v_fma_f32 {t}, -{q}, {d}, {n}")
        g(f"v_fma_f32 {q}, {t}, {rcp}, {q}")
    g(f"v_lshlrev_b32 {vT[7]}, 5, {vBq}")
    def st_body():
        g(f"ds_read_b128 {r8[0:4]}, {vT[7]} offset:{ST}")
        g(f"ds_read_b128 {r8[4:8]}, {vT[7]} offset:{ST+16}")
        g.wait_lg(None)
        g(f"v_add_f32 {vT[0]}, {r8[0]}, {r8[2]}")
        g(f"v_add_f32 {vT[1]}, {r8[1]}, {r8[3]}")
        g(f"v_add_f32 {vT[0]}, {vT[0]}, {r8[4]}")
        g(f"v_add_f32 {vT[1]}, {vT[1]}, {r8[5]}")
        g(f"v_add_f32 {vT[0]}, {vT[0]}, {r8[6]}")
        g(f"v_add_f32 {vT[1]}, {vT[1]}, {r8[7]}")
        g(f"v_cmp_u_f32 vcc, {vT[0]}, {vT[1]}")
    lds_retry("ST", st_body)
    ln_finish(vT[0], vT[1], vT[2], vT[3], vT[4])
    g(f"v_lshlrev_b32 {vXu}, 16, {vXu}")
    g(f"v_sub_f32 {vT[4]}, {vXu}, {vT[2]}")
    bf16r(vT[4], vT[4])
    g(f"v_rcp_f32 {vT[5]}, {vT[3]}")
    div_exact(vT[6], vT[4], vT[3], vT[5], vT[7])
    bf16r(vLnx, vT[6])
    g.wait_lg(None)
    g(f"s_mul_i32 {sTag}, {sTag}, 1664525")
    g(f"s_add_u32 {sTag}, {sTag}, 1013904223")
    if exit_here("A"):
        g("s_branch L_end")
        return_early = True

    if cfg.spinonly:
        wait_prog(252 if cfg.spinonly == 1 else 252, 1 if cfg.spinonly == 1 else 8)
        g("s_branch L_end")
    hD = ["s94", "s95", "s96", "s97"]; hO = ["s84", "s85", "s86", "s87"]
    def hint_wait(name, base_sreg, steps, field):
        g(f"s_mul_i32 {hO[0]}, {base_sreg}, {BS}")
        g(f"s_add_u32 {hO[0]}, {hO[0]}, {field}")
        b0 = steps[0]
        if b0: g(f"s_add_u32 {hO[0]}, {hO[0]}, {b0 * BS}")
        for i in range(1, 4): g(f"s_add_u32 {hO[i]}, {hO[0]}, {(steps[i] - b0) * BS}")
        L = f"L_{name}_h"; Lo = L + "o"
        g(f"s_mov_b32 {sTry2}, 0")
        g.label(L)
        for i in range(4): g(f"s_load_dword {hD[i]}, {pBlk}, {hO[i]} glc")
        g.wait_lg(None)
        g(f"s_add_u32 {sTry2}, {sTry2}, 1")
        g(f"s_cmp_gt_u32 {sTry2}, 20000")
        g(f"s_cbranch_scc1 {Lo}")
        for i in range(4):
            g(f"s_cmp_eq_u32 {hD[i]}, -1")
            g(f"s_cbranch_scc1 {L}")
        g.label(Lo)
    def gather(name, issue, after_first, consume, delay, trig=None, hint=None):
        if cfg.prio: g("s_setprio 0")
        if trig is not None: wait_prog(trig)
        if hint is not None and cfg.hints: hint(); delay = cfg.hdelay.get(name, 0)
        if cfg.yield_ and name in cfg.lead_for and delay > cfg.lead:
            g(f"s_sleep {delay - cfg.lead}")
            set_pause(1)
            g(f"s_sleep {cfg.lead}")
        elif delay: g(f"s_sleep {delay}")
        if name in cfg.skew_for and cfg.skew:
            Lv = f"L_{name}_vs"; Lve = Lv + "e"
            g(f"s_mov_b32 {sTry}, s95")
            g.label(Lv)
            g(f"s_cmp_eq_u32 {sTry}, 0")
            g(f"s_cbranch_scc1 {Lve}")
            g("s_sleep 1")
            g(f"s_sub_u32 {sTry}, {sTry}, 1")
            g(f"s_branch {Lv}")
            g.label(Lve)
        g(f"s_mov_b32 {sTry}, 0")
        Lc = f"L_{name}_consume"; Lok = f"L_{name}_ok"
        stamp("i" + name)
        issue(name)
        set_pause(0)
        after_first()
        stamp("p" + name)
        g.wait_vm(name)
        if cfg.prio: g(f"s_setprio {cfg.prio}")
        stamp("w" + name)
        g.label(Lc)
        consume()
        g(f"s_cbranch_vccz {Lok}")
        g(f"s_add_u32 {sTry}, {sTry}, 1")
        g(f"s_cmp_gt_u32 {sTry}, {cfg.retry_limit}")
        g(f"s_cbranch_scc1 {Lok}")
        st = g.save_state()
        if cfg.delays["back"]: g(f"s_sleep {cfg.delays['back']}")
        issue("opt")
        g.emit("s_waitcnt vmcnt(0)")
        g(f"s_branch {Lc}")
        g.label(Lok)
        g.restore_state(st)
        g.flush_hazards(1)
        stamp("#" + name, sTry)
        if name in cfg.pause_after: set_pause(1)

    def flag2_check(name, vprod, delay=0):
        g(f"v_lshlrev_b32 {vprod}, 7, {vprod}")
        g(f"v_add_u32 {vprod}, {WS_FLAG + 64}, {vprod}")
        def iss(tag): g(f"global_load_dword {vT[7]}, {vprod}, {pWs} sc1", vm=tag)
        def con(): g(f"v_cmp_ne_u32 vcc, {sTag}, {vT[7]}")
        gather(name, iss, lambda: None, con, delay)
    V.release(m_stage)
    vFl = V.one()
    g(f"s_lshr_b32 {sT2}, {sV}, 2")
    g(f"s_lshl_b32 {sT2}, {sT2}, 3")
    g(f"s_add_u32 {sT2}, {sT2}, {sX}")
    g(f"v_and_b32 {vT[0]}, 7, {vL}")
    g(f"v_lshlrev_b32 {vT[3]}, 5, {vT[0]}")
    g(f"v_bfe_u32 {vT[1]}, {vL}, 3, 1")
    g(f"v_lshl_add_u32 {vT[1]}, {vT[1]}, 4, {vT[3]}")
    g(f"v_add_u32 {vT[1]}, {sT2}, {vT[1]}")
    g(f"s_and_b32 {sT3}, {sX}, 3")
    g(f"s_lshl_b32 {sT3}, {sT3}, 3")
    g(f"s_add_u32 {sT3}, {sT3}, {sV}")
    g(f"s_lshl_b32 {sT3}, {sT3}, 3")
    g(f"v_add_u32 {vT[2]}, {sT3}, {vT[0]}")
    g(f"v_cmp_gt_u32 vcc, 16, {vL}")
    g(f"v_cndmask_b32 {vT[1]}, {vT[2]}, {vT[1]}, vcc")
    g(f"v_lshlrev_b32 {vFl}, 7, {vT[1]}")
    g(f"v_add_u32 {vFl}, {WS_FLAG}, {vFl}")
    vG1 = V.one()
    g(f"v_lshlrev_b32 {vT[0]}, 5, {vR8}")
    g(f"v_add_u32 {vT[0]}, {sT2}, {vT[0]}")
    g(f"s_mov_b32 {sT0}, {BS}")
    g(f"v_mul_lo_u32 {vG1}, {vT[0]}, {sT0}")
    g(f"v_and_b32 {vT[1]}, 7, {vL}")
    g(f"v_lshl_add_u32 {vG1}, {vT[1]}, 4, {vG1}")
    g(f"s_and_b32 {sT3}, {sV}, 3")
    g(f"s_lshl_b32 {sT3}, {sT3}, 7")
    g(f"v_add_u32 {vG1}, {sT3}, {vG1}")
    add64(pB16, pBlk, 16 * BS)
    vXQw = V.one()
    g(f"v_mul_u32_u24 {vXQw}, 272, {vBq}")
    g(f"v_lshl_add_u32 {vXQw}, {vColq}, 1, {vXQw}")
    g(f"s_lshl_b32 {sT3}, {sV}, 5")
    g(f"v_add_u32 {vXQw}, {sT3}, {vXQw}")
    vPQw = V.one()
    g(f"v_lshlrev_b32 {vPQw}, 9, {vL16}")
    g(f"v_lshl_add_u32 {vPQw}, {vG}, 4, {vPQw}")
    g(f"s_lshl_b32 {sT3}, {sV}, 6")
    g(f"v_add_u32 {vPQw}, {sT3}, {vPQw}")
    vFv = V.rng(2)
    if cfg.serial: wait_prog(L_WO)
    def fl_issue(tag): g(f"global_load_dwordx2 {vFv}, {vFl}, {pWs} sc1", vm=tag)
    def fl_consume(): g(f"v_cmp_ne_u32 vcc, {sTag}, {vFv[0]}")
    def q_issue(tag):
        g(f"global_load_dwordx4 {gl[0:4]}, {vG1}, {pBlk} offset:{F_PA} sc1", vm=tag)
        g(f"global_load_dwordx4 {gl[4:8]}, {vG1}, {pB16} offset:{F_PA} sc1", vm=tag)
    def reduce4(a, out):
        g(f"v_permlane32_swap_b32 {a[0]}, {a[2]}")
        g(f"v_permlane32_swap_b32 {a[1]}, {a[3]}")
        g(f"v_add_f32 {a[0]}, {a[0]}, {a[2]}")
        g(f"v_add_f32 {a[1]}, {a[1]}, {a[3]}")
        g(f"v_permlane16_swap_b32 {a[0]}, {a[1]}")
        g(f"v_add_f32 {out}, {a[0]}, {a[1]}")
    vS, vCc = V.one(), V.one()
    def q_consume():
        reduce4(gl[0:4], vS)
        reduce4(gl[4:8], vCc)
        g(f"v_add_f32_dpp {vS}, {vS}, {vS} row_ror:8 row_mask:0xf bank_mask:0xf")
        g(f"v_add_f32_dpp {vCc}, {vCc}, {vCc} row_ror:8 row_mask:0xf bank_mask:0xf")
        g(f"v_cmp_u_f32 vcc, {vS}, {vCc}")
    def q_pre():
        wait_prog(L_WQ)
        tr_reads(vB, vTr256, 4, 8192, 1024, 0)
        g.wait_lg(None)
        signal_free(FR_WQ)
    vG2 = V.one()
    g(f"s_and_b32 {sT3}, {sX}, 3")
    g(f"s_lshl_b32 {sT3}, {sT3}, 3")
    g(f"s_add_u32 {sT3}, {sT3}, {sV}")
    g(f"s_lshl_b32 {sT3}, {sT3}, 3")
    g(f"v_lshrrev_b32 {vT[0]}, 5, {vL}")
    g(f"v_add_u32 {vT[0]}, {sT3}, {vT[0]}")
    g(f"s_mov_b32 {sT0}, {BS}")
    g(f"v_mul_lo_u32 {vG2}, {vT[0]}, {sT0}")
    g(f"v_bfe_u32 {vT[1]}, {vL}, 2, 3")
    g(f"v_and_b32 {vT[2]}, 3, {vL}")
    g(f"v_and_b32 {vT[3]}, 31, {vL}")
    g(f"v_lshl_add_u32 {vG2}, {vT[3]}, 4, {vG2}")
    g(f"s_lshr_b32 {sT3}, {sX}, 2")
    g(f"s_lshl_b32 {sT3}, {sT3}, 9")
    g(f"s_add_u32 {sT3}, {sT3}, {F_PQ}")
    g(f"v_add_u32 {vG2}, {sT3}, {vG2}")
    pJ = [pBlk, Rng("s", 56, 2), Rng("s", 58, 2), Rng("s", 60, 2)]
    for j in range(1, 4): add64(pJ[j], pBlk, 2 * j * BS)
    vQSw = V.one()
    g(f"v_lshlrev_b32 {vQSw}, 5, {vT[1]}")
    g(f"v_lshl_add_u32 {vQSw}, {vT[2]}, 3, {vQSw}")
    g(f"v_lshrrev_b32 {vT[1]}, 5, {vL}")
    g(f"v_lshl_add_u32 {vQSw}, {vT[1]}, 2, {vQSw}")
    g(f"s_mul_i32 {sT3}, {sV}, 272")
    g(f"v_add_u32 {vQSw}, {sT3}, {vQSw}")
    vMXw = V.one(); vMXr = V.one(); vPw = V.one(); vPSw = V.one()
    g(f"v_lshlrev_b32 {vMXw}, 5, {vL16}")
    g(f"s_lshl_b32 {sT3}, {sV}, 2")
    g(f"v_add_u32 {vMXw}, {sT3}, {vMXw}")
    g(f"v_and_b32 {vMXr}, 7, {vL}")
    g(f"v_lshlrev_b32 {vMXr}, 5, {vMXr}")
    g(f"v_mul_u32_u24 {vPw}, 272, {vL16}")
    g(f"v_lshl_add_u32 {vPw}, {vG}, 3, {vPw}")
    g(f"s_lshl_b32 {sT3}, {sV}, 5")
    g(f"v_add_u32 {vPw}, {sT3}, {vPw}")
    g(f"v_lshlrev_b32 {vPSw}, 9, {vL16}")
    g(f"v_lshl_add_u32 {vPSw}, {vG}, 4, {vPSw}")
    g(f"s_lshl_b32 {sT3}, {sV}, 6")
    g(f"s_add_u32 {sT3}, {sT3}, {F_PS}")
    g(f"v_add_u32 {vPSw}, {sT3}, {vPSw}")
    emit_stage_A()
    gather("FL", fl_issue, lambda: None, fl_consume, 0, L_WQ - cfg.trig["FL"])
    sLate = "s95"
    def late_calc():
        if not cfg.skew: return
        g(f"v_subrev_u32 {vT[0]}, s96, {vFv[1]}")
        g(f"v_max_i32 {vT[0]}, 0, {vT[0]}")
        g(f"v_min_i32 {vT[0]}, 300, {vT[0]}")
        for n in (4, 2, 1):
            g(f"v_max_i32_dpp {vT[0]}, {vT[0]}, {vT[0]} row_ror:{n} row_mask:0xf bank_mask:0xf")
        g(f"v_readlane_b32 {sLate}, {vT[0]}, 16")
        g(f"s_mul_i32 {sLate}, {sLate}, 3")
        g(f"s_lshr_b32 {sLate}, {sLate}, 3")
    def q_pre2():
        late_calc()
        q_pre()
    gather("G1", q_issue, q_pre2, q_consume, cfg.delays["Q"], L_WQ - cfg.trig["Q"])
    stamp("G1")
    g(f"v_cvt_pk_bf16_f32 {vT[0]}, {vS}, {vCc}")
    g(f"v_and_b32 {vT[1]}, 0xffff0000, {vT[0]}")
    g(f"v_lshlrev_b32 {vT[0]}, 16, {vT[0]}")
    g(f"v_add_f32 {vT[1]}, 1.0, {vT[1]}")
    bf16r(vT[1], vT[1])
    g(f"v_mul_f32 {vT[1]}, {vLnx}, {vT[1]}")
    bf16r(vT[1], vT[1])
    g(f"v_add_f32 {vT[1]}, {vT[1]}, {vT[0]}")
    g(f"v_cvt_pk_bf16_f32 {vT[1]}, {vT[1]}, {vT[1]}")
    g(f"ds_write_b16 {vXQw}, {vT[1]} offset:{XQ}")
    def q_body():
        x_reads(vA, vX272, 4, XQ)
        g.wait_lg(None)
        mfma_chain(vD, vB, vA, 4)
        g(f"v_cmp_u_f32 vcc, {vD[0]}, {vD[3]}")
    lds_retry("Q", q_body)
    set_exec(0x0003000300030003)
    g(f"global_store_dwordx4 {vPQw}, {vD}, {pOwn} offset:{F_PQ} sc1", vm="st")
    set_exec(-1)
    stamp("Q")
    if exit_here("Q"): g("s_branch L_end")

    def s_issue(tag):
        for j in range(4):
            g(f"global_load_dwordx4 {gl[4*j:4*j+4]}, {vG2}, {pJ[j]} sc1", vm=tag)
    def s_consume():
        for i in range(4):
            g(f"v_add_f32 {gl[i]}, {gl[i]}, {gl[4+i]}")
            g(f"v_add_f32 {gl[8+i]}, {gl[8+i]}, {gl[12+i]}")
        for i in range(4):
            g(f"v_add_f32 {gl[i]}, {gl[i]}, {gl[8+i]}")
        g(f"v_permlane32_swap_b32 {gl[0]}, {gl[2]}")
        g(f"v_permlane32_swap_b32 {gl[1]}, {gl[3]}")
        g(f"v_add_f32 {gl[0]}, {gl[0]}, {gl[2]}")
        g(f"v_add_f32 {gl[1]}, {gl[1]}, {gl[3]}")
        g(f"v_cmp_u_f32 vcc, {gl[0]}, {gl[1]}")
    def s_pre():
        wait_prog(L_K)
        for s in range(4):
            if s:
                g(f"v_xor_b32 {vT[s]}, {64*s}, {vKrd}")
                a_ = vT[s]
            else: a_ = vKrd
            g(f"ds_read_b128 {vB[4*s:4*s+4]}, {a_}", lg="k")
        g.wait_lg(None)
        signal_free(FR_K)
    vG3 = V.one(); vG3s = V.one(); vBp = V.one()
    vO = V.one()
    wn = [V.one() for _ in range(4)]
    g(f"s_lshr_b32 {sT2}, {sTl}, 3")
    g(f"s_lshr_b32 {sT3}, {sT2}, 3")
    g(f"s_bfe_u32 {sT5}, {sV}, 0x10001")
    g(f"s_lshl_b32 {sT5}, {sT5}, 2")
    g(f"s_add_u32 {sT3}, {sT3}, {sT5}")
    g(f"s_and_b32 {sT2}, {sT2}, 7")
    g(f"s_mov_b32 {sT0}, {BS}")
    g(f"v_lshlrev_b32 {vT[0]}, 3, {vR8}")
    g(f"v_add_u32 {vT[0]}, {sT3}, {vT[0]}")
    g(f"v_mul_lo_u32 {vG3}, {vT[0]}, {sT0}")
    g(f"s_lshl_b32 {sT6}, {sT2}, 9")
    g(f"s_add_u32 {sT6}, {sT6}, {F_PS}")
    g(f"s_bfe_u32 {sT4}, {sTl}, 0x10002")
    g(f"s_lshl_b32 {sT4}, {sT4}, 8")
    g(f"s_add_u32 {sT6}, {sT6}, {sT4}")
    g(f"s_and_b32 {sT4}, {sV}, 1")
    g(f"s_lshl_b32 {sT4}, {sT4}, 7")
    g(f"s_add_u32 {sT6}, {sT6}, {sT4}")
    g(f"v_and_b32 {vT[1]}, 7, {vL}")
    g(f"v_lshl_add_u32 {vG3}, {vT[1]}, 4, {vG3}")
    g(f"v_add_u32 {vG3}, {sT6}, {vG3}")
    g(f"s_lshl_b32 {sT5}, {sT2}, 3")
    g(f"s_add_u32 {sT5}, {sT5}, {F_PST}")
    g(f"v_and_b32 {vT[0]}, 31, {vL}")
    g(f"v_lshlrev_b32 {vT[0]}, 3, {vT[0]}")
    g(f"v_add_u32 {vT[0]}, {sT3}, {vT[0]}")
    g(f"v_mul_lo_u32 {vT[0]}, {vT[0]}, {sT0}")
    g(f"v_add_u32 {vG3s}, {sT5}, {vT[0]}")
    pJ3 = [pBlk, Rng("s", 62, 2), Rng("s", 64, 2), Rng("s", 66, 2)]
    for j in range(1, 4): add64(pJ3[j], pBlk, 64 * j * BS)
    g(f"v_lshlrev_b32 {vBp}, 2, {vR8}")
    vStA = V.rng(2)
    vXOw = V.one()
    g(f"v_lshl_add_u32 {vXOw}, {vT[1]}, 2, {vG}")
    g(f"v_lshlrev_b32 {vXOw}, 1, {vXOw}")
    g(f"s_bfe_u32 {sT5}, {sV}, 0x10001")
    g(f"s_mul_i32 {sT5}, {sT5}, 144")
    g(f"s_and_b32 {sT4}, {sV}, 1")
    g(f"s_lshl_b32 {sT4}, {sT4}, 6")
    g(f"s_add_u32 {sT5}, {sT5}, {sT4}")
    g(f"v_add_u32 {vXOw}, {sT5}, {vXOw}")
    vTrO = V.one(); vTrOb = V.one()
    g(f"v_add_u32 {vTrO}, {R3}, {vTr512}")
    g(f"v_xor_b32 {vTrOb}, 32, {vTrO}")
    g(f"s_lshl_b32 {sT3}, {sV}, 8")
    g(f"v_add_u32 {vSt2}, {sT3}, {vSt8}")
    def s_hint():
        g(f"s_and_b32 {sT3}, {sX}, 3")
        g(f"s_lshl_b32 {sT3}, {sT3}, 3")
        g(f"s_add_u32 {sT3}, {sT3}, {sV}")
        g(f"s_lshl_b32 {sT3}, {sT3}, 3")
        g(f"s_lshr_b32 {sT4}, {sX}, 2")
        g(f"s_lshl_b32 {sT4}, {sT4}, 9")
        g(f"s_add_u32 {sT4}, {sT4}, {F_PQ}")
        hint_wait("G2", sT3, [0, 3, 5, 7], sT4)
    gather("G2", s_issue, s_pre, s_consume, cfg.delays["S"], L_K - cfg.trig["S"], s_hint)
    stamp("G2")
    g(f"v_cvt_pk_bf16_f32 {vT[0]}, {gl[0]}, {gl[1]}")
    g(f"ds_write_b32 {vQSw}, {vT[0]} offset:{QS}")
    def sc_body():
        x_reads(vA, vQ272, 4, QS)
        g.wait_lg(None)
        mfma_chain(vD, vB, vA, 4)
        g(f"v_cmp_u_f32 vcc, {vD[0]}, {vD[1]}")
    lds_retry("SC", sc_body)
    sc = [V.one() for _ in range(4)]
    g(f"s_mov_b32 {sC1}, {hx(SCALE)}")
    g(f"v_cvt_pk_bf16_f32 {vT[4]}, {vD[0]}, {vD[1]}")
    g(f"v_cvt_pk_bf16_f32 {vT[5]}, {vD[2]}, {vD[3]}")
    g(f"v_lshlrev_b32 {sc[0]}, 16, {vT[4]}")
    g(f"v_and_b32 {sc[1]}, 0xffff0000, {vT[4]}")
    g(f"v_lshlrev_b32 {sc[2]}, 16, {vT[5]}")
    g(f"v_and_b32 {sc[3]}, 0xffff0000, {vT[5]}")
    for i in range(4): g(f"v_mul_f32 {sc[i]}, {sC1}, {sc[i]}")
    g(f"v_cvt_pk_bf16_f32 {vT[4]}, {sc[0]}, {sc[1]}")
    g(f"v_cvt_pk_bf16_f32 {vT[5]}, {sc[2]}, {sc[3]}")
    g(f"v_lshlrev_b32 {sc[0]}, 16, {vT[4]}")
    g(f"v_and_b32 {sc[1]}, 0xffff0000, {vT[4]}")
    g(f"v_lshlrev_b32 {sc[2]}, 16, {vT[5]}")
    g(f"v_and_b32 {sc[3]}, 0xffff0000, {vT[5]}")
    g(f"v_max3_f32 {vT[4]}, {sc[0]}, {sc[1]}, {sc[2]}")
    g(f"v_max_f32 {vT[4]}, {vT[4]}, {sc[3]}")
    xrow16("v_max_f32", vT[4], vT[5])
    xrow32("v_max_f32", vT[4], vT[5])
    set_exec(0xff)
    g(f"ds_write_b32 {vMXw}, {vT[4]} offset:{MX}")
    set_exec(-1)
    vVop = V.rng(16, 4)
    wait_prog(L_V)
    tr_reads(vVop, vTrV, 4, 8192, 1024, 0, tag="v")
    vMc = V.one()
    def mx_body():
        g(f"ds_read_b128 {vA[0:4]}, {vMXr} offset:{MX}")
        g(f"ds_read_b128 {vA[4:8]}, {vMXr} offset:{MX+16}")
        g.wait_lg(None)
        g(f"v_max3_f32 {vT[4]}, {vA[0]}, {vA[1]}, {vA[2]}")
        g(f"v_max3_f32 {vT[5]}, {vA[3]}, {vA[4]}, {vA[5]}")
        g(f"v_max3_f32 {vT[4]}, {vT[4]}, {vA[6]}, {vA[7]}")
        g(f"v_max_f32 {vMc}, {vT[4]}, {vT[5]}")
        g(f"v_cmp_eq_u32 vcc, 0x7f800000, {vMc}")
    lds_retry("MX", mx_body)
    signal_free(FR_V)
    g(f"s_mov_b32 {sC1}, {hx(LOG2E_HI)}")
    for i in range(4): g(f"v_sub_f32 {sc[i]}, {sc[i]}, {vMc}")
    for i in range(4): g(f"v_mul_f32 {sc[i]}, {sC1}, {sc[i]}")
    for i in range(4): g(f"v_exp_f32 {sc[i]}, {sc[i]}")
    g(f"v_cvt_pk_bf16_f32 {vA[0]}, {sc[0]}, {sc[1]}")
    g(f"v_cvt_pk_bf16_f32 {vA[1]}, {sc[2]}, {sc[3]}")
    set_exec(0x00ff00ff00ff00ff)
    g(f"ds_write_b64 {vPw}, {vA[0:2]} offset:{PP}")
    set_exec(-1)
    g(f"v_add_f32 {vT[4]}, {sc[0]}, {sc[1]}")
    g(f"v_add_f32 {vT[5]}, {sc[2]}, {sc[3]}")
    g(f"v_add_f32 {vT[4]}, {vT[4]}, {vT[5]}")
    xrow16("v_add_f32", vT[4], vT[5])
    xrow32("v_add_f32", vT[4], vT[5])
    set_exec(0xff)
    g(f"ds_write_b32 {vMXw}, {vT[4]} offset:{LS}")
    set_exec(-1)
    def pv_body():
        x_reads(vA, vQ272, 4, PP)
        g.wait_lg(None)
        mfma_chain(vD, vVop, vA, 4)
        g(f"v_cmp_u_f32 vcc, {vD[0]}, {vD[1]}")
    lds_retry("PV", pv_body)
    wait_prog(L_CLR, 0)
    set_exec(0x00ff00ff00ff00ff)
    g(f"global_store_dwordx4 {vPSw}, {vD}, {pOwn} sc1", vm="st")
    set_exec(-1)
    g(f"s_cmp_eq_u32 {sV}, 0")
    g("s_cbranch_scc0 L_S_nost")
    stn = g.save_state()
    def ls_body():
        g(f"ds_read_b128 {vB[0:4]}, {vMXr} offset:{LS}")
        g(f"ds_read_b128 {vB[4:8]}, {vMXr} offset:{LS+16}")
        g.wait_lg(None)
        g(f"v_add_f32 {vT[0]}, {vB[0]}, {vB[1]}")
        g(f"v_add_f32 {vT[1]}, {vB[2]}, {vB[3]}")
        g(f"v_add_f32 {vT[2]}, {vB[4]}, {vB[5]}")
        g(f"v_add_f32 {vT[3]}, {vB[6]}, {vB[7]}")
        g(f"v_add_f32 {vT[0]}, {vT[0]}, {vT[1]}")
        g(f"v_add_f32 {vT[2]}, {vT[2]}, {vT[3]}")
        g(f"v_add_f32 {vD2[1]}, {vT[0]}, {vT[2]}")
        g(f"v_cmp_u_f32 vcc, {vD2[1]}, {vD2[1]}")
    lds_retry("LS", ls_body)
    g(f"v_mov_b32 {vD2[0]}, {vMc}")
    g(f"v_add_u32 {vT[0]}, {F_PST}, {vSt8}")
    set_exec(0xff)
    g(f"global_store_dwordx2 {vT[0]}, {vD2[0:2]}, {pOwn} sc1", vm="opt")
    set_exec(-1)
    g.label("L_S_nost")
    g.restore_state(stn)
    stamp("S")
    if exit_here("S"): g("s_branch L_end")
    def modb(tagname):
        wait_prog(L_M)
        tr_reads(vB, vTr256, 4, 8192, 1024, 0)
        x_reads(vA, vX272, 4, XA)
        g.wait_lg(None)
        mfma_chain(vD, vA, vB, 4)
        g(f"s_lshl_b32 {sT3}, {sV}, 7")
        g(f"v_add_u32 {vT[0]}, {sT3}, {vSt8}")
        set_exec(0xffff)
        g(f"global_store_dwordx2 {vT[0]}, {vD[0:2]}, {pOwn} offset:{F_PM} sc1", vm="st")
        set_exec(-1)
    g(f"s_cmp_lt_u32 {sW}, 224")
    g("s_cbranch_scc1 L_skipR1")
    st_r1 = g.save_state()
    m_role = V.mark()
    g(f"s_sub_u32 {sR}, {sW}, 224")
    ones = vB[0:4]
    for i in range(4): g(f"v_mov_b32 {ones[i]}, -1")
    g(f"v_cmp_gt_u32 vcc, 384, v0")
    g("s_and_saveexec_b64 s[8:9], vcc")
    g(f"ds_write_b128 {vT16}, {ones} offset:{RA}")
    g("s_mov_b64 exec, s[8:9]")
    g.wait_lg(None)
    g(f"v_mov_b32 {vLd}, 1")
    set_exec(1)
    g(f"ds_add_u32 {vZero}, {vLd} offset:{CNT+80}")
    set_exec(-1)
    vG8 = V.one()
    g(f"s_lshr_b32 {sT2}, {sV}, 1")
    g(f"s_lshl_b32 {sT2}, {sT2}, 3")
    g(f"s_lshr_b32 {sT3}, {sR}, 2")
    g(f"s_add_u32 {sT2}, {sT2}, {sT3}")
    g(f"s_and_b32 {sT3}, {sV}, 1")
    g(f"s_lshl_b32 {sT3}, {sT3}, 7")
    g(f"s_add_u32 {sT2}, {sT2}, {sT3}")
    g(f"v_lshlrev_b32 {vT[0]}, 5, {vG}")
    g(f"v_add_u32 {vT[0]}, {sT2}, {vT[0]}")
    g(f"s_mov_b32 {sT0}, {BS}")
    g(f"v_mul_lo_u32 {vG8}, {vT[0]}, {sT0}")
    g(f"v_lshl_add_u32 {vG8}, {vL16}, 4, {vG8}")
    g(f"s_and_b32 {sT3}, {sR}, 3")
    g(f"s_lshl_b32 {sT3}, {sT3}, 8")
    g(f"s_add_u32 {sT3}, {sT3}, {F_PM}")
    g(f"v_add_u32 {vG8}, {sT3}, {vG8}")
    vPSw_ = V.one()
    g(f"v_lshl_add_u32 {vPSw_}, {vL16}, 2, {vG}")
    g(f"v_lshlrev_b32 {vPSw_}, 2, {vPSw_}")
    g(f"s_lshl_b32 {sT3}, {sV}, 8")
    g(f"v_add_u32 {vPSw_}, {sT3}, {vPSw_}")
    vRed = V.one()
    vXr = V.one(); vB2 = V.one(); vFin = V.one(); vOutA = V.one()
    g(f"v_and_b32 {vT[0]}, 31, {vL}")
    g(f"s_lshl_b32 {sT3}, {sR}, 5")
    g(f"v_add_u32 {vT[0]}, {sT3}, {vT[0]}")
    g(f"v_lshlrev_b32 {vT[0]}, 1, {vT[0]}")
    g(f"global_load_ushort {vB2}, {vT[0]}, {pB2}", vm="xr")
    g(f"v_lshrrev_b32 {vT[1]}, 5, {vL}")
    g(f"v_lshl_add_u32 {vOutA}, {vT[1]}, 11, {vT[0]}")
    g(f"global_load_ushort {vXr}, {vOutA}, {pX}", vm="xr")
    g(f"v_and_b32 {vT[0]}, 31, {vL}")
    g(f"v_lshlrev_b32 {vFin}, 3, {vT[0]}")
    g(f"v_lshl_add_u32 {vFin}, {vT[1]}, 2, {vFin}")
    vL4 = V.one()
    g(f"v_lshlrev_b32 {vL4}, 2, {vL}")
    g(f"v_add_u32 {vL4}, {F_PR}, {vL4}")
    vG4 = V.one(); vG7 = V.one()
    g(f"s_lshr_b32 {sT3}, {sR}, 3")
    g(f"s_lshl_b32 {sT2}, {sT3}, 3")
    g(f"s_add_u32 {sT2}, {sT2}, {sV}")
    g(f"v_lshlrev_b32 {vT[0]}, 5, {vG}")
    g(f"v_add_u32 {vT[0]}, {sT2}, {vT[0]}")
    g(f"v_mul_lo_u32 {vG4}, {vT[0]}, {sT0}")
    g(f"s_lshl_b32 {sT2}, {sV}, 2")
    g(f"s_add_u32 {sT2}, {sT2}, {sT3}")
    g(f"s_lshl_b32 {sT2}, {sT2}, 3")
    g(f"v_add_u32 {vT[0]}, {sT2}, {vG}")
    g(f"v_mul_lo_u32 {vG7}, {vT[0]}, {sT0}")
    g(f"s_and_b32 {sT3}, {sR}, 7")
    g(f"s_lshl_b32 {sT3}, {sT3}, 8")
    g(f"v_lshlrev_b32 {vT[1]}, 4, {vL16}")
    g(f"v_add_u32 {vT[1]}, {sT3}, {vT[1]}")
    g(f"v_add_u32 {vG4}, {vG4}, {vT[1]}")
    g(f"v_add_u32 {vG7}, {vG7}, {vT[1]}")
    g(f"v_add_u32 {vG7}, {F_PF2}, {vG7}")
    g(f"v_add_u32 {vG4}, {F_PO}, {vG4}")
    add64(pB16, pBlk, 128 * BS)
    pB4 = Rng("s", 52, 2)
    add64(pB4, pBlk, 4 * BS)
    vGa = V.one(); vGb = V.one(); vRed2 = V.one()
    mv = vA[0:8]
    def pack_pairs(dst, x, t):
        g(f"v_mov_b32 {t}, {x}")
        g(f"v_mov_b32 {dst}, {x}")
        g(f"v_permlane32_swap_b32 {dst}, {t}")
        g(f"v_cvt_pk_bf16_f32 {dst}, {dst}, {t}")
    hi_role = V.n
    V.release(m_role)
    g.label("L_skipR1")
    st_after = g.save_state()
    g.restore_state(st_r1)
    g.vm = []
    g.vm = list(st_r1[0])
    g.flush_hazards(2)

    def o_issue(tag):
        g(f"global_load_dwordx2 {vStA}, {vG3s}, {pBlk} sc1", vm=tag)
        for j in range(4):
            g(f"global_load_dwordx4 {gl[4*j:4*j+4]}, {vG3}, {pJ3[j]} sc1", vm=tag)
    def o_consume():
        t0, t1_, t2_ = vT[0], vT[1], vT[2]
        g(f"v_mov_b32 {t0}, {vStA[0]}")
        row_allreduce("v_max_f32", t0)
        xrow16("v_max_f32", t0, t1_)
        g(f"s_mov_b32 {sC1}, {hx(LOG2E_HI)}")
        g(f"v_sub_f32 {t1_}, {vStA[0]}, {t0}")
        g(f"v_mul_f32 {t1_}, {sC1}, {t1_}")
        g(f"v_exp_f32 {vT[3]}, {t1_}")
        g(f"v_mul_f32 {t1_}, {vT[3]}, {vStA[1]}")
        row_allreduce("v_add_f32", t1_)
        xrow16("v_add_f32", t1_, t2_)
        g(f"v_rcp_f32 {t2_}, {t1_}")
        g(f"v_fma_f32 {vT[5]}, -{t1_}, {t2_}, 1.0")
        g(f"v_fma_f32 {t2_}, {vT[5]}, {t2_}, {t2_}")
        g(f"v_mul_f32 {vT[3]}, {vT[3]}, {t2_}")
        for j in range(4):
            g(f"ds_bpermute_b32 {wn[j]}, {vBp}, {vT[3]} offset:{32*j}")
        g.wait_lg(None)
        for i in range(4): g(f"v_mul_f32 {gl[i]}, {gl[i]}, {wn[0]}")
        for j in range(1, 4):
            for i in range(4): g(f"v_fmac_f32 {gl[i]}, {gl[4*j+i]}, {wn[j]}")
        reduce4(gl[0:4], vO)
        row_allreduce("v_add_f32", vO, (8,))
        g(f"v_cmp_u_f32 vcc, {vO}, {vO}")
    def pre_512(flag, vtr, vtrb):
        def f():
            wait_prog(flag)
            tr_reads(vB[0:8], vtr, 2, 16384, 2048, 0)
            tr_reads(vB[8:16], vtrb, 2, 16384, 2048, 0)
        return f
    g(f"s_cmp_lt_u32 {sV}, 4")
    g("s_cbranch_scc0 L_O_nog")
    st_o = g.save_state(); n_st = len(stamps)
    def o_hint():
        g(f"s_lshr_b32 {sT2}, {sTl}, 3")
        g(f"s_lshr_b32 {sT3}, {sT2}, 3")
        g(f"s_bfe_u32 {sT5}, {sV}, 0x10001")
        g(f"s_lshl_b32 {sT5}, {sT5}, 2")
        g(f"s_add_u32 {sT3}, {sT3}, {sT5}")
        g(f"s_and_b32 {sT2}, {sT2}, 7")
        g(f"s_lshl_b32 {sT4}, {sT2}, 3")
        g(f"s_add_u32 {sT4}, {sT4}, {F_PST}")
        hint_wait("G3", sT3, [0, 80, 168, 248], sT4)
    g(f"s_lshr_b32 {sT2}, {sTl}, 6")
    g(f"s_bfe_u32 {sT5}, {sV}, 0x10001")
    g(f"s_lshl_b32 {sT5}, {sT5}, 2")
    g(f"s_add_u32 {sT3}, {sT2}, {sT5}")
    g(f"v_and_b32 {vT[6]}, 31, {vL}")
    g(f"v_lshlrev_b32 {vT[6]}, 3, {vT[6]}")
    g(f"v_add_u32 {vT[6]}, {sT3}, {vT[6]}")
    flag2_check("FL3", vT[6], cfg.delays["FL3"])
    gather("G3", o_issue, pre_512(L_WO, vTrO, vTrOb), o_consume, cfg.delays["O"], L_WO - cfg.trig["O"], o_hint)
    stamp("G3")
    g(f"v_cvt_pk_bf16_f32 {vT[0]}, {vO}, {vO}")
    g(f"ds_write_b16 {vXOw}, {vT[0]} offset:{XO}")
    g("s_branch L_O_j")
    g.label("L_O_nog")
    g.restore_state(st_o)
    names = stamps[n_st:]; del stamps[n_st:]
    pre_512(L_WO, vTrO, vTrOb)()
    for nm in names: stamp(nm, "0" if nm.startswith("#") else None)
    g("s_sleep 8")
    g.label("L_O_j")
    g.flush_hazards(1)
    def mm2(name, xbase, vst, off0):
        def body():
            x_reads(vA[0:8], vX144, 2, xbase)
            g.wait_lg(None)
            mfma_chain(vD, vA, vB[0:8], 2)
            mfma_chain(vD2, vA, vB[8:16], 2)
            g(f"v_cmp_u_f32 vcc, {vD[0]}, {vD[1]}")
        lds_retry(name, body)
        set_exec(0xffff)
        g(f"global_store_dwordx2 {vst}, {vD[0:2]}, {pOwn} offset:{off0} sc1", vm="st")
        g(f"global_store_dwordx2 {vst}, {vD2[0:2]}, {pOwn} offset:{off0+128} sc1", vm="st")
        set_exec(-1)
    mm2("O", XO, vSt2, F_PO)
    stamp("O")
    modb("M")
    stamp("M")
    if exit_here("O"): g("s_branch L_end")

    g(f"s_cmp_lt_u32 {sW}, 224")
    g("s_cbranch_scc0 L_roleR")
    st_role = g.save_state()
    V.release(m_stage)
    vmark = V.mark()
    ncommon = len(stamps)
    vTr2 = V.one(); vTr2b = V.one()
    g(f"v_add_u32 {vTr2}, {R2}, {vTr512}")
    g(f"v_xor_b32 {vTr2b}, 32, {vTr2}")
    g(f"s_and_b32 {sP1}, {sI}, 3")
    g(f"s_lshr_b32 {sNg}, {sI}, 2")
    g(f"s_lshl_b32 {sNg}, {sNg}, 3")
    g(f"s_add_u32 {sNg}, {sNg}, {sX}")
    vG5 = V.one()
    g(f"v_lshrrev_b32 {vT[0]}, 4, v0")
    g(f"v_add_u32 {vT[0]}, 224, {vT[0]}")
    g(f"s_mov_b32 {sT0}, {BS}")
    g(f"v_mul_lo_u32 {vG5}, {vT[0]}, {sT0}")
    g(f"v_lshl_add_u32 {vG5}, {vL16}, 3, {vG5}")
    g(f"v_add_u32 {vG5}, {F_PR}, {vG5}")
    vC1 = V.rng(2); vSb = V.rng(2)
    vB1 = V.one()
    g(f"s_lshl_b32 {sT2}, {sNg}, 6")
    g(f"s_lshl_b32 {sT3}, {sV}, 3")
    g(f"s_add_u32 {sT2}, {sT2}, {sT3}")
    g(f"v_and_b32 {vT[0]}, 7, {vL}")
    g(f"v_add_u32 {vT[0]}, {sT2}, {vT[0]}")
    g(f"v_lshlrev_b32 {vT[0]}, 1, {vT[0]}")
    g(f"global_load_ushort {vB1}, {vT[0]}, {pB1}", vm="b1")
    vX2 = V.rng(2); vRs = V.rng(4, 4); vG5s = V.one()
    g(f"v_and_b32 {vT[0]}, 31, {vL}")
    g(f"v_add_u32 {vT[0]}, 224, {vT[0]}")
    g(f"v_mul_lo_u32 {vG5s}, {vT[0]}, {sT0}")
    g(f"v_add_u32 {vG5s}, {F_PRST}, {vG5s}")
    vG6 = V.one(); vXF2w = V.one(); vPF1w = V.one(); vPF2w = V.one()
    g(f"v_lshlrev_b32 {vT[0]}, 3, {vG}")
    g(f"s_andn2_b32 {sT2}, {sW}, 0x18")
    g(f"v_add_u32 {vT[0]}, {sT2}, {vT[0]}")
    g(f"v_mul_lo_u32 {vG6}, {vT[0]}, {sT0}")
    g(f"v_bfe_u32 {vT[1]}, {vL}, 3, 1")
    g(f"v_lshl_add_u32 {vG6}, {vT[1]}, 9, {vG6}")
    g(f"v_and_b32 {vT[1]}, 7, {vL}")
    g(f"v_lshl_add_u32 {vG6}, {vT[1]}, 3, {vG6}")
    g(f"s_lshl_b32 {sT3}, {sV}, 6")
    g(f"s_add_u32 {sT3}, {sT3}, {F_PF1}")
    g(f"v_add_u32 {vG6}, {sT3}, {vG6}")
    g(f"v_lshrrev_b32 {vT[0]}, 5, {vL}")
    g(f"v_mul_u32_u24 {vXF2w}, 144, {vT[0]}")
    g(f"v_lshl_add_u32 {vXF2w}, {vT[1]}, 1, {vXF2w}")
    g(f"s_lshl_b32 {sT3}, {sV}, 4")
    g(f"v_add_u32 {vXF2w}, {sT3}, {vXF2w}")
    g(f"s_lshr_b32 {sT2}, {sV}, 2")
    g(f"s_lshl_b32 {sT2}, {sT2}, 9")
    g(f"s_and_b32 {sT3}, {sV}, 3")
    g(f"s_lshl_b32 {sT3}, {sT3}, 7")
    g(f"s_add_u32 {sT2}, {sT2}, {sT3}")
    g(f"s_add_u32 {sT2}, {sT2}, {F_PF1}")
    g(f"v_add_u32 {vPF1w}, {sT2}, {vSt8}")
    g(f"v_add_u32 {vPF2w}, {F_PF2}, {vSt2}")
    def f1_issue(tag):
        g(f"global_load_dwordx2 {vX2}, {vG5}, {pBlk} sc1", vm=tag)
        g(f"global_load_dwordx4 {vRs}, {vG5s}, {pBlk} sc1", vm=tag)
        g(f"global_load_dwordx2 {vC1}, {vG5}, {pBlk} offset:{F_PC1-F_PR} sc1", vm=tag)
        g(f"global_load_dwordx2 {vSb}, {vG5}, {pBlk} offset:{F_PSB-F_PR} sc1", vm=tag)
    q = [V.one() for _ in range(4)]
    def f1_consume():
        for i in range(4): g(f"v_mov_b32 {q[i]}, {vRs[i]}")
        for n in (8, 4, 2, 1):
            for i in range(4): g(f"v_add_f32_dpp {q[i]}, {q[i]}, {q[i]} row_ror:{n} row_mask:0xf bank_mask:0xf")
        for i in range(4): g(f"v_mov_b32 {vT[i]}, {q[i]}")
        for i in range(4): g(f"v_permlane16_swap_b32 {q[i]}, {vT[i]}")
        for i in range(4): g(f"v_add_f32 {q[i]}, {q[i]}, {vT[i]}")
        g(f"v_cmp_u_f32 vcc, {q[1]}, {q[3]}")
        for r_ in (vX2[0], vX2[1], vC1[0], vC1[1], vSb[0], vSb[1]):
            g(f"v_cmp_eq_u32 s[8:9], -1, {r_}")
            g(f"s_or_b64 vcc, vcc, s[8:9]")
    def f1_pre():
        wait_prog(L_W1)
        tr_reads(vB, vTr1, 4, 4096, 512, 0)
    def f1_hint():
        g(f"s_lshl_b32 {sT3}, {sV}, 2")
        g(f"s_add_u32 {sT3}, {sT3}, 224")
        hint_wait("G5", sT3, [0, 1, 2, 3], F_PRST)
    g(f"v_and_b32 {vT[6]}, 31, {vL}")
    g(f"v_add_u32 {vT[6]}, 224, {vT[6]}")
    flag2_check("FL5", vT[6], 0)
    gather("G5", f1_issue, f1_pre, f1_consume, cfg.delays["F1w"], None, f1_hint)
    stamp("G5")
    mb = [V.one(), V.one()]; sd = [V.one(), V.one()]; rc = [V.one(), V.one()]
    def ln_finish2():
        inv = hx(f2u(1.0/1024))
        for b in range(2): g(f"v_mul_f32 {q[2*b]}, {inv}, {q[2*b]}")
        for b in range(2): g(f"v_mul_f32 {q[2*b+1]}, {inv}, {q[2*b+1]}")
        for b in range(2): g(f"v_fma_f32 {q[2*b+1]}, -{q[2*b]}, {q[2*b]}, {q[2*b+1]}")
        g(f"v_cvt_pk_bf16_f32 {vT[0]}, {q[0]}, {q[2]}")
        g(f"v_cvt_pk_bf16_f32 {vT[1]}, {q[1]}, {q[3]}")
        g(f"v_lshlrev_b32 {mb[0]}, 16, {vT[0]}")
        g(f"v_and_b32 {mb[1]}, 0xffff0000, {vT[0]}")
        g(f"v_lshlrev_b32 {vT[2]}, 16, {vT[1]}")
        g(f"v_and_b32 {vT[3]}, 0xffff0000, {vT[1]}")
        g(f"v_add_f32 {vT[2]}, {hx(f2u(1e-5))}, {vT[2]}")
        g(f"v_add_f32 {vT[3]}, {hx(f2u(1e-5))}, {vT[3]}")
        g(f"v_cvt_pk_bf16_f32 {vT[1]}, {vT[2]}, {vT[3]}")
        g(f"v_lshlrev_b32 {vT[2]}, 16, {vT[1]}")
        g(f"v_and_b32 {vT[3]}, 0xffff0000, {vT[1]}")
        g(f"v_sqrt_f32 {vT[2]}, {vT[2]}")
        g(f"v_sqrt_f32 {vT[3]}, {vT[3]}")
        g(f"v_cvt_pk_bf16_f32 {vT[1]}, {vT[2]}, {vT[3]}")
        g(f"v_lshlrev_b32 {sd[0]}, 16, {vT[1]}")
        g(f"v_and_b32 {sd[1]}, 0xffff0000, {vT[1]}")
        g(f"v_rcp_f32 {rc[0]}, {sd[0]}")
        g(f"v_rcp_f32 {rc[1]}, {sd[1]}")
    ln_finish2()
    e = [[V.one(), V.one()], [V.one(), V.one()]]
    for c in range(2):
        g(f"v_lshlrev_b32 {e[c][0]}, 16, {vX2[c]}")
        g(f"v_and_b32 {e[c][1]}, 0xffff0000, {vX2[c]}")
    tq = [V.one() for _ in range(4)]; tr_ = [V.one() for _ in range(4)]
    def pair_round2():
        for c in range(2): g(f"v_cvt_pk_bf16_f32 {vT[c]}, {e[c][0]}, {e[c][1]}")
        for c in range(2):
            g(f"v_lshlrev_b32 {e[c][0]}, 16, {vT[c]}")
            g(f"v_and_b32 {e[c][1]}, 0xffff0000, {vT[c]}")
    def ln_apply():
        for c in range(2):
            for b in range(2): g(f"v_sub_f32 {e[c][b]}, {e[c][b]}, {mb[b]}")
        pair_round2()
        for c in range(2):
            for b in range(2): g(f"v_mul_f32 {tq[2*c+b]}, {e[c][b]}, {rc[b]}")
        for c in range(2):
            for b in range(2): g(f"v_fma_f32 {tr_[2*c+b]}, -{tq[2*c+b]}, {sd[b]}, {e[c][b]}")
        for c in range(2):
            for b in range(2): g(f"v_fma_f32 {tq[2*c+b]}, {tr_[2*c+b]}, {rc[b]}, {tq[2*c+b]}")
        for c in range(2):
            g(f"v_cvt_pk_bf16_f32 {vT[c]}, {tq[2*c]}, {tq[2*c+1]}")
    ln_apply()
    for c in range(2):
        g(f"v_lshlrev_b32 {e[c][0]}, 16, {vT[c]}")
        g(f"v_and_b32 {e[c][1]}, 0xffff0000, {vT[c]}")
    for c in range(2):
        g(f"v_lshlrev_b32 {tq[2*c]}, 16, {vC1[c]}")
        g(f"v_and_b32 {tq[2*c+1]}, 0xffff0000, {vC1[c]}")
    for c in range(2):
        for b in range(2): g(f"v_mul_f32 {e[c][b]}, {e[c][b]}, {tq[2*c+b]}")
    pair_round2()
    for c in range(2):
        g(f"v_lshlrev_b32 {tq[2*c]}, 16, {vSb[c]}")
        g(f"v_and_b32 {tq[2*c+1]}, 0xffff0000, {vSb[c]}")
    for c in range(2):
        for b in range(2): g(f"v_add_f32 {e[c][b]}, {e[c][b]}, {tq[2*c+b]}")
    pair_round2()
    a4 = tq
    g(f"v_add_f32 {a4[0]}, {e[0][0]}, {e[1][0]}")
    g(f"v_mul_f32 {a4[1]}, {e[0][0]}, {e[0][0]}")
    g(f"v_add_f32 {a4[2]}, {e[0][1]}, {e[1][1]}")
    g(f"v_mul_f32 {a4[3]}, {e[0][1]}, {e[0][1]}")
    g(f"v_fmac_f32 {a4[1]}, {e[1][0]}, {e[1][0]}")
    g(f"v_fmac_f32 {a4[3]}, {e[1][1]}, {e[1][1]}")
    reduce4(a4, vT[4])
    row_allreduce("v_add_f32", vT[4])
    g(f"v_lshlrev_b32 {vT[5]}, 5, {vG}")
    g(f"s_lshl_b32 {sT3}, {sV}, 2")
    g(f"v_add_u32 {vT[5]}, {sT3}, {vT[5]}")
    set_exec(0x0001000100010001)
    g(f"ds_write_b32 {vT[5]}, {vT[4]} offset:{ST2}")
    set_exec(-1)
    g(f"v_and_b32 {vT[5]}, 31, {vL}")
    g(f"v_lshlrev_b32 {vT[5]}, 2, {vT[5]}")
    def st2_body():
        g(f"ds_read_b32 {vT[4]}, {vT[5]} offset:{ST2}")
        g.wait_lg(None)
        g(f"v_add_f32_dpp {vT[4]}, {vT[4]}, {vT[4]} quad_perm:[1,0,3,2] row_mask:0xf bank_mask:0xf")
        g(f"v_add_f32_dpp {vT[4]}, {vT[4]}, {vT[4]} quad_perm:[2,3,0,1] row_mask:0xf bank_mask:0xf")
        g(f"v_add_f32_dpp {vT[4]}, {vT[4]}, {vT[4]} row_half_mirror row_mask:0xf bank_mask:0xf")
        g(f"v_cmp_u_f32 vcc, {vT[4]}, {vT[4]}")
    lds_retry("ST2", st2_body)
    for i in range(4): g(f"v_readlane_b32 s{8+i}, {vT[4]}, {8*i}")
    for i in range(4): g(f"v_mov_b32 {q[i]}, s{8+i}")
    ln_finish2()
    ln_apply()
    g(f"s_lshr_b32 {sT2}, {sV}, 1")
    g(f"s_cmp_eq_u32 {sT2}, {sP1}")
    g("s_cbranch_scc0 L_F1_noxf")
    g(f"s_mov_b32 {sT3}, 0x05040100")
    g(f"v_perm_b32 {vT[2]}, {vT[1]}, {vT[0]}, {sT3}")
    g(f"s_mov_b32 {sT3}, 0x07060302")
    g(f"v_perm_b32 {vT[3]}, {vT[1]}, {vT[0]}, {sT3}")
    g(f"v_and_b32 {vT[4]}, 127, v0")
    g(f"v_lshlrev_b32 {vT[4]}, 2, {vT[4]}")
    g(f"ds_write_b32 {vT[4]}, {vT[2]} offset:{XF}", lg="opt")
    g(f"ds_write_b32 {vT[4]}, {vT[3]} offset:{XF+528}", lg="opt")
    g.label("L_F1_noxf")
    g.flush_hazards(1)
    def f1_body():
        x_reads(vA, vX528, 4, XF)
        g.wait_lg(None)
        mfma_chain(vD, vA, vB, 4)
        g(f"v_cmp_u_f32 vcc, {vD[0]}, {vD[1]}")
    lds_retry("F1", f1_body)
    set_exec(0xffff)
    g(f"global_store_dwordx2 {vPF1w}, {vD[0:2]}, {pOwn} sc1", vm="st")
    set_exec(-1)
    stamp("F1")
    if exit_here("F1"): g("s_branch L_end")
    def f2_issue(tag): g(f"global_load_dwordx2 {gl[0:2]}, {vG6}, {pBlk} sc1", vm=tag)
    def f2_consume():
        g(f"v_permlane32_swap_b32 {gl[0]}, {gl[1]}")
        g(f"v_add_f32 {gl[0]}, {gl[0]}, {gl[1]}")
        xrow16("v_add_f32", gl[0], vT[0])
        g(f"v_add_f32_dpp {gl[0]}, {gl[0]}, {gl[0]} row_ror:8 row_mask:0xf bank_mask:0xf")
        g(f"v_cmp_u_f32 vcc, {gl[0]}, {gl[0]}")
    def f2_hint():
        g(f"s_andn2_b32 {sT3}, {sW}, 0x18")
        g(f"s_lshl_b32 {sT4}, {sV}, 6")
        g(f"s_add_u32 {sT4}, {sT4}, {F_PF1 + 512}")
        hint_wait("G6", sT3, [0, 8, 16, 24], sT4)
    gather("G6", f2_issue, pre_512(L_W2, vTr2, vTr2b), f2_consume, cfg.delays["F2"], None, f2_hint)
    stamp("G6")
    u = vT[0]
    bf16r(u, gl[0])
    g(f"v_lshlrev_b32 {vB1}, 16, {vB1}")
    g(f"v_add_f32 {u}, {u}, {vB1}")
    bf16r(u, u)
    K2 = 2 * LOG2E * 0.7978845608028654
    g(f"v_mul_f32 {vT[1]}, {u}, {u}")
    g(f"s_mov_b32 {sC1}, {hx(f2u(0.044715))}")
    g(f"v_fma_f32 {vT[1]}, {vT[1]}, {sC1}, 1.0")
    g(f"v_mul_f32 {vT[1]}, {vT[1]}, {u}")
    g(f"v_mul_f32 {vT[1]}, {hx(f2u(K2))}, {vT[1]}")
    g(f"v_min_f32 {vT[1]}, {hx(f2u(64.0))}, {vT[1]}")
    g(f"v_exp_f32 {vT[1]}, {vT[1]}")
    g(f"v_add_f32 {vT[2]}, 1.0, {vT[1]}")
    g(f"v_rcp_f32 {vT[2]}, {vT[2]}")
    g(f"v_mul_f32 {vT[1]}, {vT[1]}, {u}")
    g(f"v_mul_f32 {vT[1]}, {vT[1]}, {vT[2]}")
    g(f"v_cvt_pk_bf16_f32 {vT[1]}, {vT[1]}, {vT[1]}")
    g(f"ds_write_b16 {vXF2w}, {vT[1]} offset:{XF2}")
    mm2("F2", XF2, vPF2w, 0)
    stamp("F2")
    g("s_branch L_end")

    g.label("L_roleR")
    g.restore_state(st_role)
    g.stampsF = list(stamps)
    del stamps[ncommon:]
    V.release(hi_role)
    def r_issue_for(vaddr, p2):
        def f(tag):
            g(f"global_load_dwordx4 {gl[0:4]}, {vaddr}, {pBlk} sc1", vm=tag)
            g(f"global_load_dwordx4 {gl[4:8]}, {vaddr}, {p2} sc1", vm=tag)
        return f
    def r_consume():
        for i in range(4): g(f"v_add_f32 {gl[i]}, {gl[i]}, {gl[4+i]}")
        reduce4(gl[0:4], vRed)
        g(f"v_cmp_u_f32 vcc, {vRed}, {vRed}")
    def r48_issue(tag):
        g(f"global_load_dwordx4 {gl[0:4]}, {vG4}, {pBlk} sc1", vm=tag)
        g(f"global_load_dwordx4 {gl[4:8]}, {vG4}, {pB16} sc1", vm=tag)
        g(f"global_load_dwordx4 {gl[8:12]}, {vG8}, {pBlk} sc1", vm=tag)
    def r48_consume():
        for i in range(4): g(f"v_add_f32 {gl[i]}, {gl[i]}, {gl[4+i]}")
        reduce4(gl[0:4], vRed)
        reduce4(gl[8:12], vRed2)
        g(f"v_cmp_u_f32 vcc, {vRed}, {vRed2}")
    g(f"s_lshr_b32 {sT3}, {sR}, 3")
    g(f"s_lshl_b32 {sT3}, {sT3}, 3")
    g(f"s_add_u32 {sT3}, {sT3}, {sV}")
    g(f"v_and_b32 {vT[6]}, 7, {vL}")
    g(f"v_lshlrev_b32 {vT[6]}, 5, {vT[6]}")
    g(f"v_add_u32 {vT[6]}, {sT3}, {vT[6]}")
    g(f"s_lshr_b32 {sT3}, {sV}, 1")
    g(f"s_lshl_b32 {sT3}, {sT3}, 3")
    g(f"s_lshr_b32 {sT4}, {sR}, 2")
    g(f"s_add_u32 {sT3}, {sT3}, {sT4}")
    g(f"s_and_b32 {sT4}, {sV}, 1")
    g(f"s_lshl_b32 {sT4}, {sT4}, 7")
    g(f"s_add_u32 {sT3}, {sT3}, {sT4}")
    g(f"v_and_b32 {vT[5]}, 3, {vL}")
    g(f"v_lshlrev_b32 {vT[5]}, 5, {vT[5]}")
    g(f"v_add_u32 {vT[5]}, {sT3}, {vT[5]}")
    g(f"v_cmp_gt_u32 vcc, 8, {vL}")
    g(f"v_cndmask_b32 {vT[6]}, {vT[5]}, {vT[6]}, vcc")
    flag2_check("FL4", vT[6], 0)
    gather("G4", r48_issue, lambda: wait_flag(CNT + 80, "PSC", 8), r48_consume, cfg.delays["R4b"])
    stamp("G4")
    g(f"ds_write_b32 {vPSw_}, {vRed} offset:{PSA[1]}")
    g(f"ds_write_b32 {vPSw_}, {vRed2} offset:{PSA[0]}")
    def sum8_body(area, dst):
        def body():
            for i in range(8): g(f"ds_read_b32 {mv[i]}, {vFin} offset:{area + i*256}")
            g.wait_lg(None)
            g(f"v_add_f32 {mv[0]}, {mv[0]}, {mv[1]}")
            g(f"v_add_f32 {mv[2]}, {mv[2]}, {mv[3]}")
            g(f"v_add_f32 {mv[4]}, {mv[4]}, {mv[5]}")
            g(f"v_add_f32 {mv[6]}, {mv[6]}, {mv[7]}")
            g(f"v_add_f32 {mv[0]}, {mv[0]}, {mv[2]}")
            g(f"v_add_f32 {mv[4]}, {mv[4]}, {mv[6]}")
            g(f"v_add_f32 {dst}, {mv[0]}, {mv[4]}")
            g(f"v_cmp_u_f32 vcc, {dst}, {dst}")
        return body
    vX2r = V.one()
    mw = vB[8:16]
    g(f"s_cmp_eq_u32 {sV}, 1")
    g("s_cbranch_scc0 L_R_w1")
    stw = g.save_state()
    def mr_body():
        for i in range(4): g(f"ds_read_b32 {mv[i]}, {vFin} offset:{PSA[0] + (2+i)*256}")
        g.wait_lg(None)
        g(f"v_add_f32 {vT[1]}, {mv[0]}, {mv[1]}")
        g(f"v_add_f32 {vT[2]}, {mv[2]}, {mv[3]}")
        g(f"v_cmp_u_f32 vcc, {vT[1]}, {vT[2]}")
    lds_retry("MR", mr_body)
    bf16r(vT[2], vT[2])
    g(f"v_add_f32 {vT[2]}, 1.0, {vT[2]}")
    pack_pairs(vT[4], vT[2], vT[5])
    pack_pairs(vT[6], vT[1], vT[5])
    set_exec(0xffffffff)
    g(f"global_store_dword {vL4}, {vT[4]}, {pOwn} offset:{F_PC1-F_PR} sc1", vm="opt")
    g(f"global_store_dword {vL4}, {vT[6]}, {pOwn} offset:{F_PSB-F_PR} sc1", vm="opt")
    set_exec(-1)
    g.label("L_R_w1")
    g.restore_state(stw)
    g.flush_hazards(2)
    g(f"s_cmp_eq_u32 {sV}, 0")
    g("s_cbranch_scc0 L_R_w2")
    stw = g.save_state()
    def r_body():
        for i in range(8): g(f"ds_read_b32 {mv[i]}, {vFin} offset:{PSA[1] + i*256}")
        for i in (0, 1, 6, 7): g(f"ds_read_b32 {mw[i]}, {vFin} offset:{PSA[0] + i*256}")
        g.wait_lg(None)
        g(f"v_add_f32 {mv[0]}, {mv[0]}, {mv[1]}")
        g(f"v_add_f32 {mv[2]}, {mv[2]}, {mv[3]}")
        g(f"v_add_f32 {mv[4]}, {mv[4]}, {mv[5]}")
        g(f"v_add_f32 {mv[6]}, {mv[6]}, {mv[7]}")
        g(f"v_add_f32 {vGa}, {mw[0]}, {mw[1]}")
        g(f"v_add_f32 {vGb}, {mw[6]}, {mw[7]}")
        g(f"v_add_f32 {mv[0]}, {mv[0]}, {mv[2]}")
        g(f"v_add_f32 {mv[4]}, {mv[4]}, {mv[6]}")
        g(f"v_add_f32 {vT[1]}, {vGa}, {vGb}")
        g(f"v_add_f32 {vT[0]}, {mv[0]}, {mv[4]}")
        g(f"v_cmp_u_f32 vcc, {vT[0]}, {vT[1]}")
    lds_retry("R", r_body)
    g(f"v_cvt_pk_bf16_f32 {vT[1]}, {vT[0]}, {vGa}")
    g(f"v_lshlrev_b32 {vT[0]}, 16, {vT[1]}")
    g(f"v_and_b32 {vGa}, 0xffff0000, {vT[1]}")
    g(f"v_mul_f32 {vT[0]}, {vGa}, {vT[0]}")
    bf16r(vT[0], vT[0])
    g(f"v_lshlrev_b32 {vXr}, 16, {vXr}")
    g(f"v_add_f32 {vT[0]}, {vXr}, {vT[0]}")
    bf16r(vX2r, vT[0])
    pack_pairs(vT[4], vX2r, vT[5])
    set_exec(0xffffffff)
    g(f"global_store_dword {vL4}, {vT[4]}, {pOwn} sc1", vm="opt")
    set_exec(-1)
    g(f"v_mov_b32 {vT[0]}, {vX2r}")
    g(f"v_mul_f32 {vT[1]}, {vX2r}, {vX2r}")
    for n in (8, 4, 2, 1):
        g(f"v_add_f32_dpp {vT[0]}, {vT[0]}, {vT[0]} row_ror:{n} row_mask:0xf bank_mask:0xf")
        g(f"v_add_f32_dpp {vT[1]}, {vT[1]}, {vT[1]} row_ror:{n} row_mask:0xf bank_mask:0xf")
    xrow16("v_add_f32", vT[0], vT[2])
    xrow16("v_add_f32", vT[1], vT[3])
    g(f"v_readlane_b32 s8, {vT[0]}, 0")
    g(f"v_readlane_b32 s9, {vT[1]}, 0")
    g(f"v_readlane_b32 s10, {vT[0]}, 32")
    g(f"v_readlane_b32 s11, {vT[1]}, 32")
    st4 = vB[4:8]
    for i in range(4): g(f"v_mov_b32 {st4[i]}, s{8+i}")
    set_exec(1)
    g(f"global_store_dwordx4 {vL4}, {st4}, {pOwn} offset:{F_PRST-F_PR} sc1", vm="opt")
    set_exec(-1)
    bf16r(vGb, vGb)
    g(f"v_lshlrev_b32 {vB2}, 16, {vB2}")
    g.label("L_R_w2")
    g.restore_state(stw)
    g.flush_hazards(2)
    stamp("R")
    if exit_here("F1"): g("s_branch L_end")
    g(f"s_cmp_eq_u32 {sV}, 7")
    g("s_cbranch_scc1 L_Rf_zero")
    def rf_hint():
        g(f"s_lshr_b32 {sT3}, {sR}, 3")
        g(f"s_lshl_b32 {sT4}, {sV}, 2")
        g(f"s_add_u32 {sT3}, {sT3}, {sT4}")
        g(f"s_lshl_b32 {sT3}, {sT3}, 3")
        g(f"s_and_b32 {sT4}, {sR}, 7")
        g(f"s_lshl_b32 {sT4}, {sT4}, 8")
        g(f"s_add_u32 {sT4}, {sT4}, {F_PF2}")
        hint_wait("G7", sT3, [0, 3, 5, 7], sT4)
    gather("G7", r_issue_for(vG7, pB4), lambda: None, r_consume, cfg.delays["Rf"], None, rf_hint)
    if cfg.prof and cfg.prof != 1:
        g("s_branch L_Rf_j")
        g.label("L_Rf_zero")
        stamps.pop(); stamp("#G7", "0")
        g(f"v_mov_b32 {vRed}, 0")
        g.label("L_Rf_j")
    else:
        g("s_branch L_Rf_j")
        g.label("L_Rf_zero")
        g(f"v_mov_b32 {vRed}, 0")
        g.label("L_Rf_j")
    g.flush_hazards(1)
    stamp("G7")
    g(f"ds_write_b32 {vPSw_}, {vRed} offset:{PSA[2]}")
    g(f"s_cmp_eq_u32 {sV}, 0")
    g("s_cbranch_scc0 L_end")
    lds_retry("Rf", sum8_body(PSA[2], vT[0]))
    bf16r(vT[0], vT[0])
    g(f"v_add_f32 {vT[0]}, {vT[0]}, {vB2}")
    bf16r(vT[0], vT[0])
    g(f"v_mul_f32 {vT[0]}, {vGb}, {vT[0]}")
    bf16r(vT[0], vT[0])
    g(f"v_add_f32 {vT[0]}, {vX2r}, {vT[0]}")
    g(f"v_cvt_pk_bf16_f32 {vT[0]}, {vT[0]}, {vT[0]}")
    g(f"global_store_short {vOutA}, {vT[0]}, {pOut}", vm="opt")
    g(f"s_cmp_eq_u32 {sR}, 0")
    g("s_cbranch_scc0 L_end")
    g(f"v_mov_b32 {vT[1]}, {WS_EPOCH}")
    g(f"v_mov_b32 {vT[2]}, {sTag}")
    set_exec(1)
    g(f"global_store_dword {vT[1]}, {vT[2]}, {pWs} sc1", vm="opt")
    set_exec(-1)
    stamp("Rf")
    g("s_branch L_end")
    compute_hi = V.hi

    idx_p0 = len(g.lines)
    g.label("L_pump")
    g.restore_state(st_pump)
    if cfg.pump_prio: g(f"s_setprio {cfg.pump_prio}")
    stamps_save = list(stamps); del stamps[1:]
    P = RegAlloc("v", 14, 166)
    base = P
    pvL, pvL16, pvG = vL, vL16, vG
    g(f"v_lshlrev_b32 {vT[0]}, 2, {vL}")
    set_exec(0xffffffff)
    g(f"ds_write_b32 {vT[0]}, {vZero} offset:{CNT}")
    set_exec(-1)
    pSw128 = P.one(); pR8 = P.one(); pSw256 = P.one()
    pA_ = [P.one(), P.one()]; p1_ = [P.one(), P.one()]
    pQ_ = [P.one(), P.one()]; pM_ = [P.one(), P.one()]; pV_ = [P.one(), P.one()]
    pK_ = [P.one() for _ in range(4)]; pO_ = [P.one() for _ in range(4)]
    pOne = P.one(); pSent = P.rng(4, 4); pL16b = P.one(); pPf = P.rng(4, 4)
    g(f"v_and_b32 {vT[0]}, 1, {vG}")
    g(f"v_lshlrev_b32 {vT[0]}, 1, {vT[0]}")
    g(f"v_and_b32 {vT[1]}, 7, {vL}")
    g(f"v_xor_b32 {vT[0]}, {vT[0]}, {vT[1]}")
    g(f"v_lshlrev_b32 {pSw128}, 4, {vT[0]}")
    g(f"v_lshrrev_b32 {pR8}, 3, {vL}")
    g(f"s_mov_b32 {sT0}, 12288")
    g(f"v_mad_u32_u24 {pA_[0]}, {pR8}, {sT0}, {pSw128}")
    g(f"v_xor_b32 {pA_[1]}, 64, {pA_[0]}")
    g(f"s_lshl_b32 {sRow0}, {sHi}, 7")
    g(f"s_mul_i32 {sT2}, {sRow0}, 12288")
    g(f"s_lshl_b32 {sT3}, {sX}, 1")
    g(f"s_and_b32 {sT4}, {sI}, 1")
    g(f"s_add_u32 {sT3}, {sT3}, {sT4}")
    g(f"s_bfe_u32 {sT4}, {sI}, 0x10001")
    g(f"s_lshl_b32 {sT4}, {sT4}, 4")
    g(f"s_add_u32 {sT3}, {sT3}, {sT4}")
    g(f"s_lshl_b32 {sT3}, {sT3}, 7")
    g(f"s_add_u32 {sT3}, {sT2}, {sT3}")
    g.wait_lg(None)
    g.emit("s_barrier")
    tile = Rng("s", 52, 2)
    add64(tile, pWm, sT3)
    D = cfg.depth
    issued = [0]
    def dma1(vo, step, tag, throttle=True):
        g(f"global_load_lds_dwordx4 {vo}, {tile} nt", vm=tag)
        g(f"s_add_u32 m0, m0, 1024")
        g(f"s_add_u32 {tile[0]}, {tile[0]}, {step}")
        g(f"s_addc_u32 {tile[1]}, {tile[1]}, 0")
    sProg = "s84"
    def set_prog(val):
        g(f"v_mov_b32 {pOne}, {val}")
        set_exec(1)
        g(f"ds_write_b32 {vZero}, {pOne} offset:{PROG}", lg="opt")
        set_exec(-1)
    g(f"s_load_dword {sTag}, {pWs}, {WS_EPOCH}")
    add64(pBlk, pWs, WS_BLK)
    g(f"s_mul_i32 {sT2}, {sW}, {BS}")
    add64(pOwn, pBlk, sT2)
    for i in range(4): g(f"v_mov_b32 {pSent[i]}, -1")
    g(f"v_lshlrev_b32 {pL16b}, 4, {vL}")
    add64(pA, pOwn, 0)
    for k in range(2):
        g(f"global_store_dwordx4 {pL16b}, {pSent}, {pA} offset:{(k % 4) * 1024} sc1", vm="clr1")
    g(f"v_mov_b32 {pOne}, 1")
    g(f"s_mov_b32 m0, {RA}")
    for i in range(16): dma1(pA_[i & 1], 8 * 12288, "A")
    g(f"v_lshlrev_b32 {vT[0]}, 1, {vG}")
    g(f"v_xor_b32 {vT[0]}, {vT[0]}, {vL16}")
    g(f"v_lshlrev_b32 {pSw256}, 4, {vT[0]}")
    g(f"s_mov_b32 {sT0}, 8192")
    g(f"v_mad_u32_u24 {pQ_[0]}, {vG}, {sT0}, {pSw256}")
    g(f"v_xor_b32 {pQ_[1]}, 128, {pQ_[0]}")
    g(f"s_lshl_b32 {sT2}, {sX}, 20")
    g(f"s_lshl_b32 {sT3}, {sI}, 8")
    g(f"s_add_u32 {sT2}, {sT2}, {sT3}")
    add64(tile, pWq, sT2)
    g(f"s_mov_b32 m0, {R0}")
    for i in range(cfg.startq): dma1(pQ_[(i >> 1) & 1], 4 * 8192, "wq")
    g(f"v_xor_b32 {vT[0]}, {vG}, {vL16}")
    g(f"v_lshlrev_b32 {vT[0]}, 4, {vT[0]}")
    g(f"v_lshl_add_u32 {pK_[0]}, {vG}, 8, {vT[0]}")
    for j in range(1, 4): g(f"v_xor_b32 {pK_[j]}, {64*j}, {pK_[0]}")
    g(f"v_lshl_add_u32 {pV_[0]}, {vG}, 8, {pSw256}")
    g(f"v_xor_b32 {pV_[1]}, 128, {pV_[0]}")
    g(f"s_mov_b32 {sT0}, 12288")
    g(f"v_mad_u32_u24 {pM_[0]}, {vG}, {sT0}, {pSw256}")
    g(f"v_xor_b32 {pM_[1]}, 128, {pM_[0]}")
    g(f"v_lshrrev_b32 {vT[0]}, 5, {vL}")
    g(f"v_lshlrev_b32 {vT[1]}, 1, {vT[0]}")
    g(f"v_and_b32 {vT[2]}, 31, {vL}")
    g(f"v_xor_b32 {vT[1]}, {vT[1]}, {vT[2]}")
    g(f"v_lshlrev_b32 {vT[1]}, 4, {vT[1]}")
    g(f"v_lshl_add_u32 {pO_[0]}, {vT[0]}, 11, {vT[1]}")
    g(f"v_xor_b32 {pO_[1]}, 64, {pO_[0]}")
    g(f"v_xor_b32 {pO_[2]}, 128, {pO_[0]}")
    g(f"v_xor_b32 {pO_[3]}, 192, {pO_[0]}")
    g(f"s_mov_b32 {sT0}, 7168")
    g(f"v_mad_u32_u24 {p1_[0]}, {pR8}, {sT0}, {pSw128}")
    g(f"v_xor_b32 {p1_[1]}, 64, {p1_[0]}")
    g.wait_vm("clr1")
    g.wait_lg(None)
    g(f"s_mul_i32 {sTag}, {sTag}, 1664525")
    g(f"s_add_u32 {sTag}, {sTag}, 1013904223")
    g(f"s_lshl_b32 {sT2}, {sW}, 7")
    g(f"s_add_u32 {sT2}, {sT2}, {WS_FLAG}")
    g(f"v_mov_b32 {vT[0]}, {sT2}")
    g(f"v_mov_b32 {vT[2]}, {sTag}")
    g(f"v_mov_b32 {vT[3]}, s96")
    set_exec(1)
    g(f"global_store_dwordx2 {vT[0]}, v[6:7], {pWs} sc1", vm="fl")
    set_exec(-1)
    stamp("pC")
    g.wait_vm("A")
    set_prog(L_A)
    stamp("pA")
    g(f"s_mov_b32 {sProg}, {18 + cfg.startq}")
    sOut = "s85"; sOh = "s86"
    def read_out():
        g.emit(f"s_getreg_b32 {sOut}, hwreg(HW_REG_IB_STS, 0, 4)")
        g.emit(f"s_getreg_b32 {sOh}, hwreg(HW_REG_IB_STS, 22, 2)")
        g.emit(f"s_lshl_b32 {sOh}, {sOh}, 4")
        g.emit(f"s_or_b32 {sOut}, {sOut}, {sOh}")
    def pace():
        g.emit(f"s_waitcnt vmcnt({D-1})")
    pv = [P.one() for _ in range(8)]
    sStep = "s87"; sN = "s92"; sRet = Rng("s", 90, 2); sTgt = Rng("s", 88, 2)
    def pub_prog(base, add):
        Le = g.newlabel("L_pp")
        def leaf(N):
            g.emit(f"s_waitcnt vmcnt({N})")
            g.emit(f"s_movk_i32 {sT5}, {N}")
            g.emit(f"s_branch {Le}")
        def node(vals):
            if len(vals) == 1: leaf(vals[0]); return
            m = len(vals) // 2
            Lh = g.newlabel("L_ph")
            g.emit(f"s_cmp_le_u32 {sOut}, {vals[m-1]}")
            g.emit(f"s_cbranch_scc0 {Lh}")
            node(vals[:m])
            g.label(Lh)
            node(vals[m:])
        node([2, 6, 10, 14, 18, 24, 32, 63])
        g.label(Le)
        g.emit(f"s_sub_u32 {sT5}, {base}, {sT5}")
        if add: g.emit(f"s_add_u32 {sT5}, {sT5}, {add}")
        g.emit(f"s_max_i32 {sT5}, {sT5}, 0")
        set_prog(sT5)
    def stream(n, vos, step, prev_flag=None, prev_at=None):
        vos = list(vos)
        while len(vos) < 8: vos = vos + vos
        assert n % 8 == 0
        for i in range(8): g(f"v_mov_b32 {pv[i]}, {vos[i]}")
        g(f"s_mov_b32 {sStep}, {step}")
        g(f"s_mov_b32 {sN}, {n}")
        Lr = g.newlabel("L_call")
        g.emit(f"s_getpc_b64 {sTgt}")
        g.label(Lr)
        g.emit(f"s_add_u32 {sTgt[0]}, {sTgt[0]}, L_stream-{Lr}")
        g.emit(f"s_addc_u32 {sTgt[1]}, {sTgt[1]}, 0")
        g.emit(f"s_swappc_b64 {sRet}, {sTgt}")
    pPau = P.one(); sPau = "s93"; sLag = "s94"
    def emit_stream_routine():
        g.label("L_stream")
        g.emit(f"ds_read_b32 {pPau}, {vZero} offset:{PAUSE}")
        g.label("L_stream_loop")
        for i in range(8):
            if cfg.yield_ and i % 2 == 0:
                La = g.newlabel("L_py"); Lb = La + "b"
                g.emit("s_waitcnt lgkmcnt(0)")
                g.emit(f"v_readfirstlane_b32 {sPau}, {pPau}")
                g.emit(f"ds_read_b32 {pPau}, {vZero} offset:{PAUSE}")
                g.emit(f"s_movk_i32 {sLag}, {D}")
                g.emit(f"s_cmp_eq_u32 {sPau}, 0")
                g.emit(f"s_cbranch_scc1 {La}")
                g.emit(f"s_waitcnt vmcnt({cfg.dlow-1})")
                g.emit(f"s_movk_i32 {sLag}, {cfg.dlow + 1}")
                g.label(La)
            pace()
            g.emit(f"global_load_lds_dwordx4 {pv[i]}, {tile} nt")
            g.emit(f"s_add_u32 m0, m0, 1024")
            g.emit(f"s_add_u32 {tile[0]}, {tile[0]}, {sStep}")
            g.emit(f"s_addc_u32 {tile[1]}, {tile[1]}, 0")
            if i % 4 == 3:
                g.emit(f"s_add_u32 {sProg}, {sProg}, 4")
                g.emit(f"s_sub_u32 {sT5}, {sProg}, {sLag if cfg.yield_ else D}")
                set_prog(sT5)
        g.emit(f"s_sub_u32 {sN}, {sN}, 8")
        g.emit(f"s_cmp_gt_u32 {sN}, 0")
        g.emit(f"s_cbranch_scc1 L_stream_loop")
        g.emit("s_waitcnt lgkmcnt(0)")
        g.emit(f"s_setpc_b64 {sRet}")
    prev_at = 0
    def drain():
        L = g.newlabel("L_dr")
        g.label(L)
        read_out()
        pub_prog(sProg, 0)
        g.emit(f"s_cmp_gt_u32 {sOut}, 2")
        g.emit(f"s_cbranch_scc1 {L}")
        g.emit("s_waitcnt vmcnt(0)")
        set_prog(sProg)
    def wait_free(addr, prev_flag):
        if cfg.pumponly: return
        L = g.newlabel("L_fr"); Lo = L + "_o"; Ls = L + "_s"
        g(f"ds_read_b32 {vT[0]}, {vZero} offset:{addr}")
        g.emit("s_waitcnt lgkmcnt(0)")
        g(f"v_readfirstlane_b32 {sT6}, {vT[0]}")
        g(f"s_cmp_ge_u32 {sT6}, 8")
        g(f"s_cbranch_scc1 {Lo}")
        drain()
        g(f"s_mov_b32 {sTry2}, 0")
        g.label(Ls)
        g("s_sleep 1")
        g(f"ds_read_b32 {vT[0]}, {vZero} offset:{addr}")
        g.emit("s_waitcnt lgkmcnt(0)")
        g(f"v_readfirstlane_b32 {sT6}, {vT[0]}")
        g(f"s_add_u32 {sTry2}, {sTry2}, 1")
        g(f"s_cmp_gt_u32 {sTry2}, {1 << 20}")
        g(f"s_cbranch_scc1 {Lo}")
        g(f"s_cmp_ge_u32 {sT6}, 8")
        g(f"s_cbranch_scc0 {Ls}")
        g.label(Lo)
    qpat = [pQ_[0], pQ_[0], pQ_[1], pQ_[1]]
    stream(32 - cfg.startq, qpat, 4 * 8192)
    g(f"s_lshl_b32 {sT2}, {sX}, 15")
    g(f"s_lshl_b32 {sT3}, {sI}, 7")
    g(f"s_add_u32 {sT2}, {sT2}, {sT3}")
    g(f"s_add_u32 {sT2}, {sT2}, 28672")
    g(f"s_lshl_b32 {sT4}, {sT2}, 8")
    add64(tile, pK, sT4)
    g(f"s_mov_b32 m0, {R1}")
    stream(32, pK_, 1024)
    stamp("pK")
    add64(tile, pV, sT4)
    g(f"s_mov_b32 m0, {R2}")
    stream(32, [pV_[0], pV_[0], pV_[1], pV_[1]], 1024, L_K, prev_at)
    stamp("pV")
    for k in range(2, 12):
        if k % 4 == 0: add64(pA, pA, 4096)
        g.emit(f"s_waitcnt vmcnt({D-1})")
        g.emit(f"global_store_dwordx4 {pL16b}, {pSent}, {pA} offset:{(k % 4) * 1024} sc1")
    g(f"s_add_u32 {sProg}, {sProg}, 10")
    def tile_M(prev):
        wait_free(FR_WQ, prev)
        g(f"s_mul_i32 {sT2}, {sRow0}, 12288")
        g(f"s_lshl_b32 {sT3}, {sLo}, 8")
        g(f"s_add_u32 {sT2}, {sT2}, {sT3}")
        g(f"s_add_u32 {sT2}, {sT2}, 4096")
        add64(tile, pWm, sT2)
        g(f"s_mov_b32 m0, {R0}")
        stream(32, [pM_[0], pM_[0], pM_[1], pM_[1]], 4 * 12288, prev, prev_at)
    opat = [pO_[0], pO_[1], pO_[0], pO_[1], pO_[2], pO_[3], pO_[2], pO_[3]]
    def off_o(rg_sreg, shift):
        g(f"s_lshr_b32 {sT2}, {rg_sreg}, {shift}")
        g(f"s_lshl_b32 {sT2}, {sT2}, 17")
        g(f"s_and_b32 {sT3}, {sI}, 3")
        g(f"s_lshl_b32 {sT3}, {sT3}, 9")
        g(f"s_add_u32 {sT2}, {sT2}, {sT3}")
    off_o(sTl, 2)
    add64(tile, pWo, sT2)
    g(f"s_mov_b32 m0, {R3}")
    stream(16, opat, 4096)
    g(f"s_lshl_b32 {sT2}, {sW}, 7")
    g(f"s_add_u32 {sT2}, {sT2}, {WS_FLAG + 64}")
    g(f"v_mov_b32 {vT[0]}, {sT2}")
    g(f"v_mov_b32 {vT[1]}, {sTag}")
    g.emit("s_waitcnt vmcnt(16)")
    set_exec(1)
    g.emit(f"global_store_dword {vT[0]}, {vT[1]}, {pWs} sc1")
    set_exec(-1)
    stream(16, opat, 4096)
    stamp("pO")
    tile_M(L_V)
    stamp("pM")
    g(f"s_cmp_lt_u32 {sW}, 224")
    g("s_cbranch_scc1 L_pump_F")
    drain()
    g("s_branch L_end")
    g.label("L_pump_F")
    g(f"s_and_b32 {sP1}, {sI}, 3")
    g(f"s_lshr_b32 {sNg}, {sI}, 2")
    g(f"s_lshl_b32 {sNg}, {sNg}, 3")
    g(f"s_add_u32 {sNg}, {sNg}, {sX}")
    wait_free(FR_K, L_WO)
    g(f"s_lshl_b32 {sT2}, {sP1}, 8")
    g(f"s_mul_i32 {sT2}, {sT2}, 7168")
    g(f"s_lshl_b32 {sT3}, {sNg}, 7")
    g(f"s_add_u32 {sT2}, {sT2}, {sT3}")
    add64(tile, pW1, sT2)
    g(f"s_mov_b32 m0, {R1}")
    stream(32, p1_, 8 * 7168, L_WO, prev_at)
    stamp("p1")
    wait_free(FR_V, L_W1)
    off_o(sNg, 0)
    add64(tile, pW2, sT2)
    g(f"s_mov_b32 m0, {R2}")
    stream(32, opat, 4096, L_W1, prev_at)
    drain()
    stamp("p2")
    g("s_branch L_end")
    emit_stream_routine()
    g.stampsP = list(stamps)
    stamps[:] = stamps_save
    V.hi = max(V.hi, P.hi)
    idx_p1 = len(g.lines)
    g.lines = g.lines[:idx_c0] + g.lines[idx_p0:idx_p1] + g.lines[idx_c0:idx_p0] + g.lines[idx_p1:]
    return finish(g, V, cfg, stamps)

def finish(g, V, cfg, stamps):
    g.label("L_end")
    if cfg.prof:
        g("s_mov_b64 exec, -1")
        g("s_memrealtime s[100:101]")
        g.emit("s_waitcnt lgkmcnt(0)")
        g("v_mov_b32 v167, s100")
        g("s_mov_b64 exec, 1")
        g(f"ds_write_b32 v166, v167 offset:{DBGL + 4*63}")
        g("s_mov_b64 exec, -1")
        g.emit("s_waitcnt lgkmcnt(0)")
        g("v_and_b32 v1, 63, v0")
        g("v_lshl_add_u32 v2, v1, 2, v166")
        g(f"ds_read_b32 v3, v2 offset:{DBGL}")
        g("s_mul_i32 s8, s2, 2304")
        g(f"s_add_u32 s8, s8, {WS_DBG}")
        g("v_add_u32 v2, s8, v2")
        g.emit("s_waitcnt lgkmcnt(0)")
        g("global_store_dword v2, v3, s[44:45]")
    g.label("L_exit")
    g.label("L_codeend")
    g("s_endpgm")
    nv = 168 if cfg.prof else (V.hi + 7) // 8 * 8
    g.raw('.section .rodata,"a"')
    g.raw(".p2align 6")
    g.raw(f".amdhsa_kernel {KNAME}")
    g.raw(f"  .amdhsa_next_free_vgpr {nv}")
    g.raw("  .amdhsa_next_free_sgpr 102")
    g.raw(f"  .amdhsa_accum_offset {nv}")
    g.raw("  .amdhsa_group_segment_fixed_size 0")
    g.raw("  .amdhsa_kernarg_size 120")
    g.raw("  .amdhsa_user_sgpr_count 2")
    g.raw("  .amdhsa_user_sgpr_kernarg_segment_ptr 1")
    g.raw("  .amdhsa_system_sgpr_workgroup_id_x 1")
    g.raw("  .amdhsa_float_denorm_mode_32 3")
    g.raw(".end_amdhsa_kernel")
    g.stamps = stamps
    if not hasattr(g, "stampsF"): g.stampsF = list(stamps)
    if not hasattr(g, "stampsP"): g.stampsP = []
    g.nv = nv
    return g

if __name__ == "__main__":
    import argparse, json
    ap = argparse.ArgumentParser()
    ap.add_argument("--stop", default=None)
    ap.add_argument("--prof", action="store_true")
    ap.add_argument("--depth", type=int, default=16)
    ap.add_argument("--delays", default="")
    ap.add_argument("--trig", default="")
    ap.add_argument("--pumponly", action="store_true")
    ap.add_argument("--noclear", action="store_true")
    ap.add_argument("-o", default="k.s")
    a = ap.parse_args()
    Cfg.stop = a.stop; Cfg.prof = 2 if a.prof else False; Cfg.depth = a.depth; Cfg.pumponly = a.pumponly; Cfg.noclear = a.noclear
    for kv in a.delays.split(","):
        if kv: k, v = kv.split("="); Cfg.delays[k] = int(v)
    for kv in a.trig.split(","):
        if kv: k, v = kv.split("="); Cfg.trig[k] = int(v)
    g = build(Cfg)
    open(a.o, "w").write(g.text())
    print("instructions:", g.count, "vgprs:", g.nv)
    json.dump({"F": g.stampsF, "R": g.stamps, "P": g.stampsP}, open(a.o + ".stamps", "w"))
```
